```python
import torch

def _softmax(x, axis=-1):
    return torch.softmax(x, dim=axis)
def _gelu(x):
    return torch.nn.functional.gelu(x, approximate="tanh")
def _silu(x):
    return torch.nn.functional.silu(x)
def _sigmoid(x):
    return torch.sigmoid(x)
def _layernorm(x, axis=-1, eps=1e-5):
    m = x.mean(dim=axis, keepdim=True)
    v = x.var(dim=axis, keepdim=True, unbiased=False)
    return (x - m) / torch.sqrt(v + eps)
def _scatter_add(tgt, idx, src, axis=0):
    return tgt.clone().index_add_(axis, idx, src)
def _segment_sum(src, seg, n):
    out = torch.zeros((n,) + src.shape[1:], dtype=src.dtype)
    return out.index_add_(0, seg, src)
def _pad(x, pw):
    flat = tuple(v for pair in reversed(pw) for v in pair)
    return torch.nn.functional.pad(x, flat)

kernel_name = 'parallel_sum__gqa_block_cached__glu_gated_swiglu__decode'

def setup_inputs():

    _w = (lambda a: (lambda t: t.to(torch.bfloat16) if t.is_floating_point() else t)(torch.as_tensor(a)))
    def _A_setup():
        B, Sq, D = 4, 1, 512
        Hq, Hkv, Sk, Dh = 32, 8, 4096, 128
        assert Hq % Hkv == 0, (Hq, Hkv)
        return {
            "x": _w((lambda *s: torch.randn(*s, dtype=torch.bfloat16) * 0.05)(B, Sq, D)),
            "k_cache": _w((lambda *s: torch.randn(*s, dtype=torch.bfloat16) * 1.6)(B, Hkv, Sk, Dh)),
            "v_cache": _w((lambda *s: torch.randn(*s, dtype=torch.bfloat16) * 0.8)(B, Hkv, Sk, Dh)),
            "wq": _w((lambda *s: torch.randn(*s, dtype=torch.bfloat16) * 1.6)(D, Hq * Dh) * (D ** -0.5)),
            "wo": _w((lambda *s: torch.randn(*s, dtype=torch.bfloat16) * 0.8)(Hq * Dh, D) * ((Hq * Dh) ** -0.5)),
        }
    _A_in = _A_setup()

    def _B_setup():
        B, S, D, F = 4, 1, 512, 1792
        return {
            "x": _w((lambda *s: torch.randn(*s, dtype=torch.bfloat16) * 0.05)(B, S, D)),
            "w1": _w((lambda *s: torch.randn(*s, dtype=torch.bfloat16) * 0.4)(D, F) * (2.0 / D) ** 0.5),
            "w3": _w((lambda *s: torch.randn(*s, dtype=torch.bfloat16) * 0.4)(D, F) * (2.0 / D) ** 0.5),
            "w2": _w((lambda *s: torch.randn(*s, dtype=torch.bfloat16) * 0.4)(F, D) * (2.0 / F) ** 0.5),
        }
    _B_in = _B_setup()

    return {
        "A_x": _A_in["x"],
        "A_k_cache": _A_in["k_cache"],
        "A_v_cache": _A_in["v_cache"],
        "A_wq": _A_in["wq"],
        "A_wo": _A_in["wo"],
        "B_x": _B_in["x"],
        "B_w1": _B_in["w1"],
        "B_w3": _B_in["w3"],
        "B_w2": _B_in["w2"],
    }

def reference(A_x, A_k_cache, A_v_cache, A_wq, A_wo, B_x, B_w1, B_w3, B_w2):
    def _A_ref(x, k_cache, v_cache, wq, wo):
        B, Sq, D = x.shape
        Hq, Dh = 32, 128
        Hkv = k_cache.shape[1]
        rep = Hq // Hkv
        q = (lambda x, *d: x.permute(*d))((x @ wq).reshape(B, Sq, Hq, Dh), 0, 2, 1, 3)
        k = (lambda x, n, axis: torch.repeat_interleave(x, n, dim=axis))(k_cache, rep, axis=1)
        v = (lambda x, n, axis: torch.repeat_interleave(x, n, dim=axis))(v_cache, rep, axis=1)
        scores = torch.einsum("bhqd,bhkd->bhqk", q, k) * (Dh ** -0.5)
        p = _softmax(scores, axis=-1)
        o = torch.einsum("bhqk,bhkd->bhqd", p, v)
        return (lambda x, *d: x.permute(*d))(o, 0, 2, 1, 3).reshape(B, Sq, Hq * Dh) @ wo

    def _B_ref(x, w1, w3, w2):
        gate = torch.einsum("bsd,df->bsf", x, w1)
        up = torch.einsum("bsd,df->bsf", x, w3)
        h = _silu(gate) * up
        out = torch.einsum("bsf,fd->bsd", h, w2)
        return out

    x = A_x
    xn = _layernorm(x, axis=-1)
    return x + _A_ref(xn, A_k_cache, A_v_cache, A_wq, A_wo) + _B_ref(xn, B_w1, B_w3, B_w2)
```

```python
import re

TRANS = ("v_exp_f32", "v_log_f32", "v_rcp_f32", "v_rsq_f32", "v_sqrt_f32", "v_sin_f32", "v_cos_f32")

def _regs(tok):
    tok = tok.strip()
    tok = tok.lstrip("-")
    if tok.startswith("abs(") and tok.endswith(")"): tok = tok[4:-1]
    if tok.startswith("|") and tok.endswith("|"): tok = tok[1:-1]
    m = re.fullmatch(r"([vsa])(\d+)", tok)
    if m: return m.group(1), {int(m.group(2))}
    m = re.fullmatch(r"([vsa])\[(\d+):(\d+)\]", tok)
    if m: return m.group(1), set(range(int(m.group(2)), int(m.group(3)) + 1))
    if tok == "vcc": return "s", {106, 107}
    if tok == "exec": return "s", {126, 127}
    return None, set()

class Ins:
    def __init__(self, text):
        self.text = text
        t = text.split(";")[0].strip()
        self.label = t.endswith(":")
        self.directive = t.startswith(".")
        self.empty = t == ""
        self.mn = ""
        self.vw = set(); self.vr = set(); self.sw = set(); self.sr = set()
        self.srcC = set(); self.srcAB = set()
        self.kind = "other"
        self.dpp = False
        self.ws = 1
        if self.label or self.directive or self.empty:
            self.ws = 0
            return
        parts = t.split(None, 1)
        self.mn = parts[0]
        rest = parts[1] if len(parts) > 1 else ""
        ops = []
        depth = 0; cur = ""
        for ch in rest:
            if ch == "[": depth += 1
            if ch == "]": depth -= 1
            if ch == "," and depth == 0:
                ops.append(cur.strip()); cur = ""
            else: cur += ch
        if cur.strip(): ops.append(cur.strip())
        mods = ""
        if ops:
            sp = ops[-1].split(None, 1)
            if len(sp) > 1 and not ops[-1].startswith("abs("):
                ops[-1] = sp[0]; mods = sp[1]
        self.ops = ops; self.mods = mods
        mn = self.mn
        if mn == "s_nop":
            self.ws = int(ops[0], 0) + 1; self.kind = "salu"; return
        def addr(tok):
            k, r = _regs(tok)
            if k == "v": self.vr |= r
            elif k == "s": self.sr |= r
        def addw(tok):
            k, r = _regs(tok)
            if k == "v": self.vw |= r
            elif k == "s": self.sw |= r
        if mn.startswith("v_mfma"):
            self.kind = "mfma"
            addw(ops[0])
            for o in ops[1:3]:
                addr(o); self.srcAB |= _regs(o)[1] if _regs(o)[0] == "v" else set()
            addr(ops[3]); self.srcC = _regs(ops[3])[1] if _regs(ops[3])[0] == "v" else set()
        elif mn.startswith("v_"):
            self.kind = "valu"
            self.dpp = "_dpp" in mn or "quad_perm" in mods or "row_" in mods
            if mn.startswith("v_cmp"):
                addw(ops[0])
                for o in ops[1:]: addr(o)
            elif mn.startswith("v_permlane") and "swap" in mn:
                for o in ops[:2]: addr(o); addw(o)
            elif mn.startswith("v_add_co") or mn.startswith("v_sub_co") or mn.startswith("v_addc_co") or mn.startswith("v_subb_co"):
                addw(ops[0]); addw(ops[1])
                for o in ops[2:]: addr(o)
            else:
                addw(ops[0])
                for o in ops[1:]: addr(o)
                if mn.startswith("v_fmac") or mn.startswith("v_mac") or mn.startswith("v_dot2c"): addr(ops[0])
                if self.dpp: addr(ops[0])
                if mn.startswith("v_cndmask") and len(ops) == 3: self.sr |= {106, 107}
        elif mn.startswith("buffer_load") or mn.startswith("global_load"):
            self.kind = "vmem_ld"
            addw(ops[0])
            for o in ops[1:]: addr(o)
        elif mn.startswith("buffer_store") or mn.startswith("global_store") or mn.startswith("buffer_atomic") or mn.startswith("global_atomic"):
            self.kind = "vmem_st"
            for o in ops: addr(o)
            self.stdata = _regs(ops[0] if mn.startswith("buffer") else ops[1])[1]
            self.wide = ("x4" in mn or "x3" in mn)
        elif mn.startswith("ds_"):
            self.kind = "ds"
            if mn.startswith("ds_read") or "rtn" in mn or "permute" in mn or "swizzle" in mn:
                addw(ops[0])
                for o in ops[1:]: addr(o)
            else:
                for o in ops: addr(o)
        elif mn.startswith("s_"):
            self.kind = "salu"
            if mn.startswith("s_cmp") or mn.startswith("s_cbranch") or mn.startswith("s_branch") or mn in ("s_waitcnt", "s_barrier", "s_sleep", "s_setprio", "s_endpgm"):
                for o in ops: addr(o)
            else:
                if ops: addw(ops[0])
                for o in ops[1:]: addr(o)

def need(prev, cur):
    n = 0
    if prev.kind == "valu":
        if cur.kind == "mfma" and (prev.vw & cur.vr): n = max(n, 2)
        if cur.kind == "valu":
            if cur.dpp and (prev.vw & cur.vr): n = max(n, 2)
            if cur.mn.startswith("v_permlane") and (prev.vw & cur.vr): n = max(n, 2)
            if cur.mn.startswith("v_readlane") or cur.mn.startswith("v_readfirstlane"):
                if prev.vw & cur.vr: n = max(n, 1)
                if prev.sw & cur.sr: n = max(n, 4)
            if prev.mn.startswith(TRANS) and not cur.mn.startswith(TRANS) and (prev.vw & cur.vr): n = max(n, 1)
            if prev.mn.startswith(TRANS) and (prev.vw & cur.vr): n = max(n, 1)
            if prev.sw & cur.sr: n = max(n, 2)
        if cur.kind in ("vmem_ld", "vmem_st") and (prev.sw & cur.sr): n = max(n, 5)
        if cur.kind == "mfma" and (prev.sw & {126, 127}): n = max(n, 4)
    if prev.kind == "mfma":
        assert "16x16x32" in prev.mn, prev.text
        D = prev.vw
        if cur.kind == "mfma":
            if D & cur.srcAB: n = max(n, 8)
            if D & cur.srcC:
                n = max(n, 0 if cur.srcC == D else 6)
            elif D & cur.vw: n = max(n, 8)
        elif cur.kind in ("valu", "vmem_ld", "vmem_st", "ds"):
            if D & (cur.vr | cur.vw): n = max(n, 8)
        if cur.kind == "valu" and (prev.srcC & cur.vw): n = max(n, 3)
        if cur.kind in ("vmem_ld", "ds") and (prev.srcC & cur.vw): n = max(n, 3)
    if prev.kind == "vmem_st" and getattr(prev, "wide", False):
        if cur.kind in ("valu", "mfma") and (prev.stdata & cur.vw): n = max(n, 2)
        elif prev.stdata & cur.vw: n = max(n, 1)
    if prev.kind == "ds" and prev.mn.startswith("ds_write") and ("b128" in prev.mn or "b96" in prev.mn):
        if cur.kind in ("valu", "mfma") and (prev.vr & cur.vw): n = max(n, 2)
    return n

class Asm:
    def __init__(self):
        self.lines = []
    def __call__(self, text):
        for l in text.strip("\n").split("\n"):
            self.lines.append(l.strip())
    def finalize(self):
        out = []
        for l in self.lines:
            cur = Ins(l)
            if cur.ws > 0:
                dist = 0; req = 0
                for p in reversed(out):
                    if p.ws == 0: continue
                    r = need(p, cur)
                    if r > dist: req = max(req, r - dist)
                    dist += p.ws
                    if dist > 12: break
                if req > 0:
                    out.append(Ins(f"s_nop {req-1}"))
            out.append(cur)
        return "\n".join(("" if (i.label or i.directive or i.text.startswith(";")) else "    ") + i.text for i in out) + "\n"
```

```python
import sys, struct
from asmlib import Asm
NAME = "parallel_sum__gqa_block_cached__glu_gated_swiglu__decode"

def f2u(x): return struct.unpack("<I", struct.pack("<f", x))[0]

QP = 0x10000
XP = 0x100000
AP = 0x200000
OP = 0x300000
STAMP = 0x8000000
F_Q, F_CNT, F_ISS, F_W2, F_O, F_S1, F_XN = 0, 4, 8, 12, 16, 20, 24
Q_LDS = 256
ML_LDS = 1280
H_LDS = 1536
O_LDS = 1792
W2R = 2304
OPART = 4352
PS = 272
WSTR = 8 * PS
S1X = OPART + 8 * WSTR
XN_LDS = S1X + 3072
LDS_BYTES = XN_LDS + 4096
BOUND = 2000000

def gen(out, stamps=False, opts=None):
    opts = opts or {}
    defer = opts.get("defer", True)
    a = Asm()
    hdr = open("cdna_kernels/%s.s.ref" % NAME).read().split("; Override launch")[0]
    a.lines += hdr.strip("\n").split("\n")
    a(f"; @launch grid=(256,1,1) block=(768,1,1) lds={LDS_BYTES}")
    a('.amdgcn_target "amdgcn-amd-amdhsa--gfx950"')
    a(".text"); a(f".globl {NAME}_kernel"); a(".p2align 8"); a(f".type {NAME}_kernel,@function"); a(f"{NAME}_kernel:")
    def stamp(k):
        if stamps: a(f"s_memrealtime s[{60+2*k}:{61+2*k}]")
    def stamp_out(role, n):
        if not stamps: return
        a("s_waitcnt lgkmcnt(0)")
        a("s_mov_b64 exec, 1")
        a(f"s_mul_i32 s4, s2, {16*8*8}")
        a(f"s_add_u32 s4, s4, {STAMP + role*64}")
        a("v_mov_b32 v1, s4")
        for k in range(n):
            a(f"v_mov_b32 v2, s{60+2*k}"); a(f"v_mov_b32 v3, s{61+2*k}")
            a(f"buffer_store_dwordx2 v[2:3], v1, s[56:59], 0 offen offset:{8*k}")
        a("s_mov_b64 exec, -1")
    def srd(d, lo, size):
        a(f"s_mov_b32 s{d}, s{lo}"); a(f"s_mov_b32 s{d+1}, s{lo+1}"); a(f"s_mov_b32 s{d+2}, {size:#x}"); a(f"s_mov_b32 s{d+3}, 0x20000")
    uid = [0]
    def lds_spin(off, val, sleep=2):
        uid[0] += 1; L = f"L_spin{uid[0]}"
        a("s_mov_b32 s5, 0")
        a(f"{L}:")
        a(f"ds_read_b32 v4, v5 offset:{off}")
        a("s_waitcnt lgkmcnt(0)")
        a("v_readfirstlane_b32 s4, v4")
        a(f"s_cmp_ge_u32 s4, {val}")
        a(f"s_cbranch_scc1 {L}_done")
        if sleep: a(f"s_sleep {sleep}")
        a("s_add_u32 s5, s5, 1")
        a(f"s_cmp_lt_u32 s5, {BOUND*4}")
        a(f"s_cbranch_scc1 {L}")
        a(f"{L}_done:")
    def lds_add(off):
        a("s_mov_b64 exec, 1")
        a(f"ds_add_u32 v5, v6 offset:{off}")
        a("s_mov_b64 exec, -1")
    def xswap(op, regs, tmps, which):
        for r, t in zip(regs, tmps): a(f"v_mov_b32 v{t}, v{r}")
        for r, t in zip(regs, tmps): a(f"v_permlane{which}_swap_b32 v{r}, v{t}")
        for r, t in zip(regs, tmps): a(f"{op} v{r}, v{r}, v{t}")
    def xreduce(op, r, t):
        xswap(op, [r], [t], 16); xswap(op, [r], [t], 32)
    DPPM = "row_mask:0xf bank_mask:0xf"
    def bf16r(r):
        a(f"v_cvt_pk_bf16_f32 v{r}, v{r}, v{r}"); a(f"v_lshlrev_b32 v{r}, 16, v{r}")
    def tag_wait():
        a("s_waitcnt lgkmcnt(0)")
        a("s_add_u32 s42, s40, 1"); a("s_addc_u32 s43, s41, 0")
    MASKS = [16 + 2 * t for t in range(12)] + [84 + 2 * t for t in range(4)]
    def mpoll(name, loads, regs, sleep=0, st_cnt=None):
        n = len(loads)
        a("s_mov_b32 s9, 0")
        for t in range(n): a(loads[t])
        a(f"L_{name}:")
        a("s_waitcnt vmcnt(0)")
        for t in range(n):
            m = MASKS[t]
            a(f"v_cmp_ne_u64 s[{m}:{m+1}], v[{regs[t]+2}:{regs[t]+3}], s[42:43]")
        if n == 1: a(f"s_mov_b64 s[6:7], s[{MASKS[0]}:{MASKS[0]+1}]")
        else: a(f"s_or_b64 s[6:7], s[{MASKS[0]}:{MASKS[0]+1}], s[{MASKS[1]}:{MASKS[1]+1}]")
        for t in range(2, n): a(f"s_or_b64 s[6:7], s[6:7], s[{MASKS[t]}:{MASKS[t]+1}]")
        a("s_cmp_eq_u64 s[6:7], 0"); a(f"s_cbranch_scc1 L_{name}_done")
        a("s_add_u32 s9, s9, 1"); a(f"s_cmp_ge_u32 s9, {BOUND}"); a(f"s_cbranch_scc1 L_{name}_done")
        if sleep: a(f"s_sleep {sleep}")
        for t in range(n):
            m = MASKS[t]
            a(f"s_mov_b64 exec, s[{m}:{m+1}]")
            a(f"s_cbranch_execz L_{name}_sk{t}")
            a(loads[t])
            a(f"L_{name}_sk{t}:")
        a("s_mov_b64 exec, -1")
        a(f"s_branch L_{name}")
        a(f"L_{name}_done:")
        if stamps and st_cnt is not None:
            a("s_waitcnt lgkmcnt(0)")
            a(f"s_mul_i32 s4, s9, 100"); a(f"s_add_u32 s{60+2*st_cnt}, s60, s4"); a(f"s_addc_u32 s{61+2*st_cnt}, s61, 0")

    a("s_cmp_ge_u32 s2, 256"); a("s_cbranch_scc1 L_end")
    stamp(0)
    a("s_load_dwordx16 s[16:31], s[0:1], 0")
    a("s_load_dwordx8 s[32:39], s[0:1], 64")
    a("v_lshrrev_b32 v1, 6, v0")
    a("v_and_b32 v0, 63, v0")
    a("v_readfirstlane_b32 s3, v1")
    a("v_mov_b32 v5, 0"); a("v_mov_b32 v6, 1")
    a("s_mov_b32 s76, 0x05040100"); a("s_mov_b32 s77, 0x07060302")
    a(f"s_mov_b32 s78, {f2u(1.4426950408889634):#x}")
    a(f"s_mov_b32 s79, {f2u(128 ** -0.5):#x}")
    a(f"s_mov_b32 s80, {f2u(-1.4426950408889634):#x}")
    a("s_mov_b32 s81, 0xffff0000")
    a("v_lshlrev_b32 v2, 2, v0"); a("s_mov_b64 exec, 0xff"); a("ds_write_b32 v2, v5"); a("s_mov_b64 exec, -1")
    a("v_and_b32 v1, 15, v0")
    a("v_lshrrev_b32 v7, 4, v0")
    a("s_bfe_u32 s92, s2, 0x30003"); a("s_lshr_b32 s93, s2, 6"); a("s_and_b32 s94, s2, 7"); a("s_and_b32 s95, s2, 63"); a("s_lshr_b32 s96, s2, 6")
    a("s_waitcnt lgkmcnt(0)")
    a("s_load_dwordx2 s[40:41], s[38:39], 0")
    srd(56, 38, 0x10000000)
    a("s_cmp_ge_u32 s3, 8"); a("s_cbranch_scc1 L_helper")

    KR, VR, QB, PR = 8, 72, 136, 140
    srd(44, 18, 0x2000000); srd(48, 20, 0x2000000)
    a("s_lshl_b32 s52, s93, 6"); a("s_lshl_b32 s4, s92, 3"); a("s_add_u32 s52, s52, s4"); a("s_add_u32 s52, s52, s94")
    a("s_lshl_b32 s52, s52, 17"); a("s_lshl_b32 s4, s3, 14"); a("s_add_u32 s52, s52, s4")
    a("s_add_u32 s53, s52, 4096"); a("s_add_u32 s54, s52, 8192"); a("s_add_u32 s55, s52, 12288")
    a("v_lshrrev_b32 v2, 2, v1"); a("v_lshlrev_b32 v2, 8, v2"); a("v_lshl_add_u32 v2, v7, 6, v2")
    a("v_and_b32 v3, 3, v1"); a("v_lshl_add_u32 v2, v3, 4, v2")
    a("v_lshlrev_b32 v3, 4, v0")
    thr = [opts.get("thr", 3)]
    thr2 = opts.get("thr2", 8)
    QW = opts.get("qw", 8)
    nld = [0]
    def ld(kind, i):
        if kind == "V" and i >= QW: thr[0] = thr2
        if nld[0] >= thr[0]: a(f"s_waitcnt vmcnt({thr[0]-1})")
        nld[0] += 1
        if kind == "K": a(f"buffer_load_dwordx4 v[{KR+4*i}:{KR+4*i+3}], v2, s[44:47], s{52+(i>>2)} offen offset:{(i&3)*1024} nt")
        else: a(f"buffer_load_dwordx4 v[{VR+4*i}:{VR+4*i+3}], v3, s[48:51], s{52+(i>>2)} offen offset:{(i&3)*1024} nt")
    for i in range(16):
        if i == thr[0]:
            a("s_barrier")
            if opts.get("prof"): stamp(5)
        ld("K", i)
        if opts.get("prof") and i == 7: stamp(6)
    if opts.get("prof"): stamp(7)
    for i in range(QW): ld("V", i)
    stamp(1)
    tag_wait()
    lds_spin(F_Q, 1)
    stamp(2)
    a(f"ds_read_b128 v[{QB}:{QB+3}], v2 offset:{Q_LDS}")
    vnext = [QW]
    def nextv():
        if vnext[0] < 16:
            ld("V", vnext[0]); vnext[0] += 1
            if vnext[0] == opts.get("isspt", 16): lds_add(F_ISS)
    nextv()
    if QW + 1 < thr2: a(f"s_waitcnt vmcnt({QW+1})")
    a("s_waitcnt lgkmcnt(0)")
    for i in range(16):
        k = KR + 4 * i
        a(f"v_mfma_f32_16x16x32_bf16 v[{k}:{k+3}], v[{k}:{k+3}], v[{QB}:{QB+3}], 0")
    nextv()
    for grp in range(4):
        for c in range(4):
            for i in range(grp * 4, grp * 4 + 4):
                k = KR + 4 * i
                if c == 0: a(f"v_mov_b32_dpp v{k}, v{k} quad_perm:[0,0,0,0] {DPPM}")
                else: a(f"v_add_f32_dpp v{k}, v{k+c}, v{k} quad_perm:[{c},{c},{c},{c}] {DPPM}")
    nextv()
    T = [KR + 4 * i for i in range(16)]
    for step in range(5):
        for i in range(0, 16, 2):
            t0, t1, pk = T[i], T[i + 1], T[i] + 1
            if step == 0: a(f"v_cvt_pk_bf16_f32 v{pk}, v{t0}, v{t1}")
            if step == 1: a(f"v_lshlrev_b32 v{t0}, 16, v{pk}"); a(f"v_and_b32 v{t1}, s81, v{pk}")
            if step == 2: a(f"v_mul_f32 v{t0}, s79, v{t0}"); a(f"v_mul_f32 v{t1}, s79, v{t1}")
            if step == 3: a(f"v_cvt_pk_bf16_f32 v{pk}, v{t0}, v{t1}")
            if step == 4: a(f"v_lshlrev_b32 v{t0}, 16, v{pk}"); a(f"v_and_b32 v{t1}, s81, v{pk}")
    nextv()
    M, Lr, TMP, NM = 148, 149, 150, 151
    a(f"v_max3_f32 v{M}, v{T[0]}, v{T[1]}, v{T[2]}")
    a(f"v_max3_f32 v{TMP}, v{T[3]}, v{T[4]}, v{T[5]}")
    a(f"v_max3_f32 v{M}, v{M}, v{T[6]}, v{T[7]}")
    a(f"v_max3_f32 v{TMP}, v{TMP}, v{T[8]}, v{T[9]}")
    a(f"v_max3_f32 v{M}, v{M}, v{T[10]}, v{T[11]}")
    a(f"v_max3_f32 v{TMP}, v{TMP}, v{T[12]}, v{T[13]}")
    a(f"v_max3_f32 v{M}, v{M}, v{T[14]}, v{T[15]}")
    a(f"v_max_f32 v{M}, v{M}, v{TMP}")
    xreduce("v_max_f32", M, TMP)
    a(f"v_mul_f32 v{NM}, s80, v{M}")
    for i in range(16): a(f"v_fma_f32 v{T[i]}, v{T[i]}, s78, v{NM}")
    for i in range(16): a(f"v_exp_f32 v{T[i]}, v{T[i]}")
    nextv()
    for k in range(8): a(f"v_cvt_pk_bf16_f32 v{PR+k}, v{T[2*k]}, v{T[2*k+1]}")
    a(f"v_add_f32 v{Lr}, v{T[0]}, v{T[1]}"); a(f"v_add_f32 v{TMP}, v{T[2]}, v{T[3]}")
    for i in range(4, 16, 2):
        a(f"v_add_f32 v{Lr}, v{Lr}, v{T[i]}"); a(f"v_add_f32 v{TMP}, v{TMP}, v{T[i+1]}")
    a(f"v_add_f32 v{Lr}, v{Lr}, v{TMP}")
    xreduce("v_add_f32", Lr, TMP)
    a(f"s_mul_i32 s4, s3, {WSTR}")
    a(f"v_lshl_add_u32 v152, v0, 2, s4")
    a("v_lshrrev_b32 v153, 2, v0"); a("v_lshlrev_b32 v153, 6, v153"); a("s_lshl_b32 s4, s3, 3"); a("v_add_u32 v153, s4, v153")
    a("s_mov_b64 exec, 0x1111")
    a(f"ds_write_b64 v153, v[{M}:{M+1}] offset:{ML_LDS}")
    a("s_mov_b64 exec, -1")
    stamp(3)
    nextv()
    DO = 40
    BOs = (8, VR)
    def vwait(i):
        outstanding_after = vnext[0] - 1 - i
        if outstanding_after < thr[0]: a(f"s_waitcnt vmcnt({outstanding_after})")
    def perms(u, p):
        BO = BOs[u]
        i = 8 * u + 2 * p
        vwait(i + 1)
        r0, r1 = VR + 4 * i, VR + 4 * (i + 1)
        for x in range(4):
            a(f"v_perm_b32 v{BO+4*(2*x)+p}, v{r1+x}, v{r0+x}, s76")
            a(f"v_perm_b32 v{BO+4*(2*x+1)+p}, v{r1+x}, v{r0+x}, s77")
    def mfmas(u):
        for j in range(8):
            d = DO + 4 * j; b = BOs[u] + 4 * j
            c = "0" if u == 0 else f"v[{d}:{d+3}]"
            a(f"v_mfma_f32_16x16x32_bf16 v[{d}:{d+3}], v[{PR+4*u}:{PR+4*u+3}], v[{b}:{b+3}], {c}")
    nextv(); nextv()
    while vnext[0] < 16: nextv()
    for p in range(4): perms(0, p)
    mfmas(0)
    a("v_and_b32 v154, 31, v0")
    a("v_lshrrev_b32 v155, 5, v0")
    a("s_cmp_ge_u32 s3, 4"); a("s_cbranch_scc1 L_pre_hi")
    a(f"v_and_b32 v156, 3, v154"); a(f"v_mul_u32_u24 v156, {2*PS}, v156")
    a("v_lshrrev_b32 v157, 2, v154"); a("v_lshl_add_u32 v157, v155, 3, v157"); a("s_lshl_b32 s4, s3, 4"); a("v_add_u32 v157, s4, v157")
    a("v_lshl_add_u32 v156, v157, 2, v156")
    a("s_lshl_b32 s4, s3, 6"); a("v_mov_b32 v157, s4")
    a("v_lshlrev_b32 v158, 14, v155"); a("v_lshl_add_u32 v158, v154, 4, v158")
    a("s_lshl_b32 s4, s92, 2"); a("s_add_u32 s4, s4, s3"); a("s_lshl_b32 s8, s4, 15")
    a("s_lshl_b32 s4, s93, 12"); a("s_add_u32 s8, s8, s4")
    a("s_lshl_b32 s4, s94, 9"); a("s_add_u32 s8, s8, s4"); a(f"s_add_u32 s8, s8, {AP:#x}")
    a("v_mov_b32 v162, s42"); a("v_mov_b32 v163, s43")
    a("s_branch L_pre_done")
    a("L_pre_hi:")
    a("v_lshlrev_b32 v158, 11, v155"); a("v_lshl_add_u32 v158, v154, 4, v158")
    a("s_lshl_b32 s8, s95, 14"); a("s_sub_u32 s4, s3, 4"); a("s_lshl_b32 s10, s4, 12"); a("s_add_u32 s8, s8, s10"); a(f"s_add_u32 s8, s8, {AP:#x}")
    a("s_lshl_b32 s4, s4, 7"); a("v_lshl_add_u32 v156, v154, 2, s4")
    a("L_pre_done:")
    for p in range(4): perms(1, p)
    mfmas(1)
    stamp(4)
    for j in range(8):
        a(f"ds_write_b32 v152, v{DO+4*j} offset:{OPART + j*PS}")
    a("s_waitcnt lgkmcnt(0)")
    lds_add(F_CNT)
    a("s_cmp_ge_u32 s3, 4"); a("s_cbranch_scc1 L_poller")
    lds_spin(F_CNT, 10, sleep=0)
    if not opts.get("prof"): stamp(5)
    for q in range(4): a(f"ds_read_b128 v[{16+4*q}:{19+4*q}], v157 offset:{ML_LDS + 16*q}")
    for w in range(8):
        a(f"ds_read_b32 v{32+2*w}, v156 offset:{OPART + w*WSTR}")
        a(f"ds_read_b32 v{33+2*w}, v156 offset:{OPART + w*WSTR + PS}")
    a("s_waitcnt lgkmcnt(15)")
    a("s_waitcnt lgkmcnt(0)") if stamps else None
    ms = [16 + 2 * w for w in range(8)]
    a(f"v_max3_f32 v48, v{ms[0]}, v{ms[1]}, v{ms[2]}"); a(f"v_max3_f32 v49, v{ms[3]}, v{ms[4]}, v{ms[5]}")
    a(f"v_max3_f32 v48, v48, v{ms[6]}, v{ms[7]}"); a("v_max_f32 v48, v48, v49")
    a("v_mul_f32 v49, s80, v48")
    for w in range(8): a(f"v_fma_f32 v{ms[w]}, v{ms[w]}, s78, v49")
    for w in range(8): a(f"v_exp_f32 v{ms[w]}, v{ms[w]}")
    a(f"v_mul_f32 v50, v{ms[0]}, v{ms[0]+1}")
    for w in range(1, 8): a(f"v_fmac_f32 v50, v{ms[w]}, v{ms[w]+1}")
    a("v_rcp_f32 v53, v50"); a("v_log_f32 v54, v50")
    a("s_waitcnt lgkmcnt(0)")
    a(f"v_mul_f32 v51, v{ms[0]}, v32"); a(f"v_mul_f32 v52, v{ms[0]}, v33")
    for w in range(1, 8):
        a(f"v_fmac_f32 v51, v{ms[w]}, v{32+2*w}"); a(f"v_fmac_f32 v52, v{ms[w]}, v{33+2*w}")
    a("v_sub_f32 v161, v54, v49")
    a("v_mul_f32 v51, v51, v53"); a("v_mul_f32 v52, v52, v53")
    a("v_cvt_pk_bf16_f32 v160, v51, v52")
    a("buffer_store_dwordx4 v[160:163], v158, s[56:59], s8 offen sc1")
    if not opts.get("prof"): stamp(6)
    if stamps:
        a("s_cmp_eq_u32 s3, 0"); a("s_cbranch_scc0 L_end")
        stamp_out(0, 8)
    a("s_endpgm")
    a("L_poller:")
    G4 = [8 + 4 * t for t in range(4)]
    mpoll("ap", [f"buffer_load_dwordx4 v[{G4[t]}:{G4[t]+3}], v158, s[56:59], s8 offen offset:{t*512} sc1" for t in range(4)], G4,
          sleep=opts.get("ap_sleep", 1), st_cnt=None if opts.get("prof") else 7)
    if not opts.get("prof"): stamp(5)
    a(f"v_max3_f32 v24, v{G4[0]+1}, v{G4[1]+1}, v{G4[2]+1}"); a(f"v_max_f32 v24, v24, v{G4[3]+1}")
    xswap("v_max_f32", [24], [25], 32)
    for t in range(4): a(f"v_sub_f32 v{G4[t]+1}, v{G4[t]+1}, v24")
    for t in range(4): a(f"v_exp_f32 v{G4[t]+1}, v{G4[t]+1}")
    for t in range(4): a(f"v_lshlrev_b32 v{G4[t]+2}, 16, v{G4[t]}"); a(f"v_and_b32 v{G4[t]+3}, s81, v{G4[t]}")
    a(f"v_add_f32 v26, v{G4[0]+1}, v{G4[1]+1}"); a(f"v_mul_f32 v27, v{G4[0]+1}, v{G4[0]+2}"); a(f"v_mul_f32 v28, v{G4[0]+1}, v{G4[0]+3}")
    a(f"v_fmac_f32 v27, v{G4[1]+1}, v{G4[1]+2}"); a(f"v_fmac_f32 v28, v{G4[1]+1}, v{G4[1]+3}")
    for t in (2, 3):
        a(f"v_add_f32 v26, v26, v{G4[t]+1}"); a(f"v_fmac_f32 v27, v{G4[t]+1}, v{G4[t]+2}"); a(f"v_fmac_f32 v28, v{G4[t]+1}, v{G4[t]+3}")
    xswap("v_add_f32", [26, 27, 28], [29, 30, 31], 32)
    a("v_rcp_f32 v26, v26")
    a("v_mul_f32 v27, v27, v26"); a("v_mul_f32 v28, v28, v26")
    a("v_cvt_pk_bf16_f32 v27, v27, v28")
    a(f"ds_write_b32 v156, v27 offset:{O_LDS}")
    a("s_waitcnt lgkmcnt(0)")
    lds_add(F_O)
    if not opts.get("prof"): stamp(6)
    if stamps:
        a("s_cmp_eq_u32 s3, 7"); a("s_cbranch_scc0 L_end")
        stamp_out(1, 8)
    a("s_endpgm")

    a("L_helper:")
    a("s_barrier")
    a("s_setprio 3")
    if opts.get("cpf", 1):
        a("s_cmp_lg_u32 s3, 11"); a("s_cbranch_scc1 L_nocpf")
        a("s_getpc_b64 s[100:101]")
        a("L_pcbase:")
        a("s_and_b32 s100, s100, 0xffffff00")
        a(f"s_sub_u32 s100, s100, {opts.get('_pcoff', 0x1000):#x}"); a("s_subb_u32 s101, s101, 0")
        a("s_lshr_b32 s4, s2, 3"); a("s_and_b32 s4, s4, 7"); a("s_lshl_b32 s4, s4, 12")
        a("v_lshl_add_u32 v2, v0, 6, s4")
        a(f"v_cmp_gt_u32 vcc, {opts.get('_csize', 0x1000):#x}, v2")
        a("s_and_saveexec_b64 s[6:7], vcc")
        a("s_cbranch_execz L_cpf_x")
        a("global_load_dword v160, v2, s[100:101]")
        a("L_cpf_x:")
        a("s_mov_b64 exec, -1")
        a("L_nocpf:")
    srd(48, 16, 4096)
    a("s_sub_u32 s10, s3, 8")
    XS, XO, WT, BT, ACC = 8, 24, 40, 104, 120
    a("s_cmp_ge_u32 s2, 240"); a("s_cbranch_scc1 L_s1_skip")
    a("s_lshr_b32 s97, s2, 4"); a("s_lshl_b32 s97, s97, 3"); a("s_add_u32 s97, s97, s94"); a("s_bfe_u32 s83, s2, 0x10003")
    a("s_mov_b32 s44, s22"); a("s_mov_b32 s45, s23"); a("s_mov_b32 s46, 0x400000"); a("s_mov_b32 s98, 8192"); a("s_lshl_b32 s11, s97, 7")
    a("s_cmp_lt_u32 s2, 128"); a("s_cbranch_scc1 L_s1_sel")
    a("s_mov_b32 s44, s28"); a("s_mov_b32 s45, s29"); a(f"s_mov_b32 s46, {512*3584:#x}"); a("s_mov_b32 s98, 3584"); a("s_sub_u32 s4, s97, 64"); a("s_lshl_b32 s11, s4, 7")
    a("s_cmp_lt_u32 s97, 92"); a("s_cbranch_scc1 L_s1_sel")
    a("s_mov_b32 s44, s30"); a("s_mov_b32 s45, s31"); a("s_sub_u32 s4, s97, 92"); a("s_lshl_b32 s11, s4, 7")
    a("L_s1_sel:")
    a("s_mov_b32 s47, 0x20000")
    a("v_lshrrev_b32 v2, 2, v1"); a("v_lshlrev_b32 v2, 10, v2")
    a("s_lshl_b32 s82, s83, 2"); a("s_add_u32 s82, s82, s10")
    a("s_cmp_lg_u32 s10, 0"); a("s_cbranch_scc1 L_s1_nox")
    a("v_and_b32 v34, 3, v0"); a("v_lshl_add_u32 v34, v7, 2, v34"); a("v_lshl_add_u32 v34, v34, 6, v2")
    for q in range(4): a(f"buffer_load_dwordx4 v[{XS+4*q}:{XS+4*q+3}], v34, s[48:51], 0 offen offset:{16*q}")
    a("L_s1_nox:")
    a("s_lshl_b32 s4, s98, 3"); a("v_mul_lo_u32 v3, v7, s4"); a("v_lshl_add_u32 v3, v1, 3, v3")
    a("s_lshl_b32 s4, s98, 6"); a("s_mul_i32 s8, s82, s4"); a("s_add_u32 s8, s8, s11")
    a("s_mul_i32 s99, s98, 25")
    for su in range(2):
        for i in range(8):
            r = WT + (su * 8 + i) * 2
            a(f"buffer_load_dwordx2 v[{r}:{r+1}], v3, s[44:47], s8 offen nt")
            if not (su == 1 and i == 7): a(f"s_add_u32 s8, s8, s{98 if i < 7 else 99}")
    a("v_lshl_add_u32 v35, v7, 4, v2"); a("s_lshl_b32 s4, s82, 7"); a("v_add_u32 v35, s4, v35")
    a("s_cmp_lg_u32 s10, 0"); a("s_cbranch_scc1 L_s1_wxn")
    U = 104
    U2 = 72
    a(f"s_waitcnt vmcnt(16)")
    for k in range(16):
        a(f"v_lshlrev_b32 v{U+2*k}, 16, v{XS+k}"); a(f"v_and_b32 v{U+2*k+1}, s81, v{XS+k}")
    S0, S1, S2, S3, TT = 24, 25, 26, 27, 28
    for ci, sreg in enumerate((S0, S1, S2, S3)):
        a(f"v_add_f32 v{sreg}, v{U+ci}, v{U+4+ci}")
    for k in range(8, 32):
        sreg = (S0, S1, S2, S3)[k & 3]
        a(f"v_add_f32 v{sreg}, v{sreg}, v{U+k}")
    a(f"v_add_f32 v{S0}, v{S0}, v{S1}"); a(f"v_add_f32 v{S2}, v{S2}, v{S3}"); a(f"v_add_f32 v{S0}, v{S0}, v{S2}")
    def lred(r):
        a(f"v_add_f32_dpp v{r}, v{r}, v{r} quad_perm:[1,0,3,2] {DPPM}")
        a(f"v_add_f32_dpp v{r}, v{r}, v{r} quad_perm:[2,3,0,1] {DPPM}")
        xreduce("v_add_f32", r, TT)
    lred(S0)
    MEAN = 29
    a(f"v_mul_f32 v{MEAN}, {f2u(1.0/512):#x}, v{S0}")
    for k in range(32): a(f"v_sub_f32 v{U2+k}, v{U+k}, v{MEAN}")
    for ci, sreg in enumerate((S0, S1, S2, S3)): a(f"v_mul_f32 v{sreg}, v{U2+ci}, v{U2+ci}")
    for k in range(4, 32):
        sreg = (S0, S1, S2, S3)[k & 3]
        a(f"v_fmac_f32 v{sreg}, v{U2+k}, v{U2+k}")
    a(f"v_add_f32 v{S0}, v{S0}, v{S1}"); a(f"v_add_f32 v{S2}, v{S2}, v{S3}"); a(f"v_add_f32 v{S0}, v{S0}, v{S2}")
    lred(S0)
    a(f"v_mul_f32 v{S0}, {f2u(1.0/512):#x}, v{S0}")
    bf16r(S0); bf16r(MEAN)
    a(f"v_add_f32 v{S0}, {f2u(1e-5):#x}, v{S0}")
    bf16r(S0)
    a(f"v_sqrt_f32 v{S0}, v{S0}")
    bf16r(S0)
    RS = 30
    a(f"v_rcp_f32 v{RS}, v{S0}")
    for k in range(32): a(f"v_sub_f32 v{U+k}, v{U+k}, v{MEAN}")
    for k in range(16): a(f"v_cvt_pk_bf16_f32 v{XS+k}, v{U+2*k}, v{U+2*k+1}")
    for k in range(16): a(f"v_lshlrev_b32 v{U+2*k}, 16, v{XS+k}"); a(f"v_and_b32 v{U+2*k+1}, s81, v{XS+k}")
    for k in range(32): a(f"v_mul_f32 v{U+k}, v{U+k}, v{RS}")
    for k in range(16): a(f"v_cvt_pk_bf16_f32 v{XS+k}, v{U+2*k}, v{U+2*k+1}")
    for q in range(4): a(f"ds_write_b128 v34, v[{XS+4*q}:{XS+4*q+3}] offset:{XN_LDS + 16*q}")
    a("s_waitcnt lgkmcnt(0)")
    lds_add(F_XN)
    a("s_branch L_s1_xn")
    a("L_s1_wxn:")
    lds_spin(F_XN, 1, sleep=1)
    a("L_s1_xn:")
    for su in range(2): a(f"ds_read_b128 v[{XO+4*su}:{XO+4*su+3}], v35 offset:{XN_LDS + 64*su}")
    a("s_waitcnt lgkmcnt(0)")
    for su in range(2):
        bt = BT
        a(f"s_waitcnt vmcnt({(1 - su) * 8})")
        for p in range(4):
            r0 = WT + (su * 8 + 2 * p) * 2; r1 = r0 + 2
            for y in range(2):
                a(f"v_perm_b32 v{bt+4*(2*y)+p}, v{r1+y}, v{r0+y}, s76")
                a(f"v_perm_b32 v{bt+4*(2*y+1)+p}, v{r1+y}, v{r0+y}, s77")
        for j in range(4):
            d = ACC + 4 * j
            c = "0" if su == 0 else f"v[{d}:{d+3}]"
            a(f"v_mfma_f32_16x16x32_bf16 v[{d}:{d+3}], v[{XO+4*su}:{XO+4*su+3}], v[{bt+4*j}:{bt+4*j+3}], {c}")
    a("v_lshlrev_b32 v2, 4, v0")
    for j in range(4): a(f"v_mov_b32 v{8+j}, v{ACC+4*j}")
    a("s_cmp_eq_u32 s10, 0"); a("s_cbranch_scc1 L_s1_red")
    a("s_lshl_b32 s4, s10, 10"); a("v_add_u32 v2, s4, v2")
    a(f"ds_write_b128 v2, v[8:11] offset:{S1X - 1024}")
    a("s_waitcnt lgkmcnt(0)")
    lds_add(F_S1)
    a("s_branch L_s1_done")
    a("L_s1_red:")
    tag_wait()
    a("v_mov_b32 v26, s42"); a("v_mov_b32 v27, s43"); a("v_mov_b32 v30, s42"); a("v_mov_b32 v31, s43")
    a("s_lshl_b32 s12, s97, 12"); a("s_lshl_b32 s4, s83, 11"); a("s_add_u32 s12, s12, s4"); a(f"s_add_u32 s12, s12, {XP:#x}")
    lds_spin(F_S1, 3, sleep=0)
    for q in range(3): a(f"ds_read_b128 v[{12+4*q}:{15+4*q}], v2 offset:{S1X + 1024*q}")
    a("s_waitcnt lgkmcnt(0)")
    for j in range(4): a(f"v_add_f32 v{8+j}, v{8+j}, v{12+j}"); a(f"v_add_f32 v{16+j}, v{16+j}, v{20+j}")
    a("v_add_f32 v24, v8, v16"); a("v_add_f32 v25, v9, v17"); a("v_add_f32 v28, v10, v18"); a("v_add_f32 v29, v11, v19")
    a("buffer_store_dwordx4 v[24:27], v2, s[56:59], s12 offen sc1")
    a("buffer_store_dwordx4 v[28:31], v2, s[56:59], s12 offen offset:1024 sc1")
    a("s_branch L_s1_done")
    a("L_s1_skip:")
    a("L_s1_done:")
    stamp(1)
    tag_wait()
    a("s_cmp_eq_u32 s3, 9"); a("s_cbranch_scc1 L_h1")
    a("s_cmp_eq_u32 s3, 10"); a("s_cbranch_scc1 L_h2")
    a("s_cmp_eq_u32 s3, 11"); a("s_cbranch_scc1 L_end")

    a("v_lshlrev_b32 v3, 12, v7"); a("v_lshl_add_u32 v3, v1, 4, v3")
    a("s_lshl_b32 s12, s92, 15"); a("s_lshl_b32 s4, s93, 8"); a("s_add_u32 s12, s12, s4"); a(f"s_add_u32 s12, s12, {XP:#x}"); a("s_add_u32 s13, s12, 16384")
    a("v_lshlrev_b32 v2, 7, v7"); a("v_lshl_add_u32 v2, v1, 3, v2")
    G = [40 + 4 * t for t in range(8)]
    mpoll("qp", [f"buffer_load_dwordx4 v[{G[t]}:{G[t]+3}], v3, s[56:59], s{12+(t>>2)} offen offset:{(t&3)*1024} sc1" for t in range(8)], G,
          sleep=opts.get("q_sleep", 2), st_cnt=5)
    stamp(3)
    for c in range(2):
        for jp in range(2):
            for e in range(2): a(f"v_add_f32 v{G[4*c+jp]+e}, v{G[4*c+jp]+e}, v{G[4*c+2+jp]+e}")
    for c in range(2):
        for jp in range(2): a(f"v_cvt_pk_bf16_f32 v{8+2*c+jp}, v{G[4*c+jp]}, v{G[4*c+jp]+1}")
    for c in range(2): a(f"ds_write_b64 v2, v[{8+2*c}:{9+2*c}] offset:{Q_LDS + c*512}")
    a("s_waitcnt lgkmcnt(0)")
    lds_add(F_Q)
    stamp(4)
    stamp_out(2, 6)
    a("s_endpgm")

    a("L_h1:")
    lds_add(F_CNT)
    a("s_cmp_ge_u32 s95, 56"); a("s_cbranch_scc1 L_h1_none")
    srd(52, 32, 1792 * 1024)
    W2 = 136
    a("s_lshl_b32 s12, s95, 15"); a("s_lshl_b32 s4, s96, 8"); a("s_add_u32 s12, s12, s4"); a("s_add_u32 s13, s12, 4096")
    def w2_loads():
        a("v_lshlrev_b32 v4, 13, v7"); a("v_lshl_add_u32 v4, v1, 4, v4")
        for i in range(8): a(f"buffer_load_dwordx4 v[{W2+4*i}:{W2+4*i+3}], v4, s[52:55], s{12+(i>>2)} offen offset:{(i&3)*1024} nt")
    if not defer: w2_loads()
    a("v_lshrrev_b32 v4, 5, v0"); a("v_lshlrev_b32 v3, 10, v4"); a("v_bfe_u32 v2, v0, 3, 2"); a("v_lshl_add_u32 v3, v2, 8, v3")
    a("v_lshlrev_b32 v8, 6, v2"); a("v_lshl_add_u32 v8, v4, 2, v8")
    a("v_and_b32 v2, 7, v0"); a("v_lshl_add_u32 v3, v2, 4, v3"); a("v_lshl_add_u32 v8, v2, 3, v8")
    a("s_lshr_b32 s4, s95, 1"); a("s_lshl_b32 s84, s4, 12"); a("s_and_b32 s4, s95, 1"); a("s_lshl_b32 s4, s4, 7"); a("s_add_u32 s84, s84, s4"); a(f"s_add_u32 s84, s84, {XP + 64*4096:#x}")
    a(f"s_add_u32 s85, s84, {28*4096}")
    G4h = [40 + 4 * t for t in range(4)]
    mpoll("gp", [f"buffer_load_dwordx4 v[{G4h[t]}:{G4h[t]+3}], v3, s[56:59], s{84+(t>>1)} offen offset:{(t&1)*2048} sc1" for t in range(4)], G4h,
          sleep=opts.get("g_sleep", 8))
    stamp(3)
    for e in range(2): a(f"v_add_f32 v{40+e}, v{40+e}, v{44+e}"); a(f"v_add_f32 v{48+e}, v{48+e}, v{52+e}")
    a("v_cvt_pk_bf16_f32 v40, v40, v41"); a("v_cvt_pk_bf16_f32 v44, v48, v49")
    ga, up, tm = 48, 52, 56
    a(f"v_lshlrev_b32 v{ga}, 16, v40"); a(f"v_and_b32 v{ga+1}, s81, v40")
    a(f"v_lshlrev_b32 v{up}, 16, v44"); a(f"v_and_b32 v{up+1}, s81, v44")
    for e in range(2): a(f"v_mul_f32 v{tm+e}, s80, v{ga+e}")
    for e in range(2): a(f"v_exp_f32 v{tm+e}, v{tm+e}")
    for e in range(2): a(f"v_add_f32 v{tm+e}, 1.0, v{tm+e}")
    for e in range(2): a(f"v_rcp_f32 v{tm+e}, v{tm+e}")
    for e in range(2): a(f"v_mul_f32 v{tm+e}, v{ga+e}, v{tm+e}")
    a(f"v_cvt_pk_bf16_f32 v40, v{tm}, v{tm+1}")
    a(f"v_lshlrev_b32 v{tm}, 16, v40"); a(f"v_and_b32 v{tm+1}, s81, v40")
    for e in range(2): a(f"v_mul_f32 v{tm+e}, v{tm+e}, v{up+e}")
    a(f"v_cvt_pk_bf16_f32 v40, v{tm}, v{tm+1}")
    a(f"ds_write_b32 v8, v40 offset:{H_LDS}")
    a("v_lshrrev_b32 v2, 2, v1"); a("v_lshlrev_b32 v2, 6, v2"); a("v_lshl_add_u32 v2, v7, 4, v2")
    a("s_waitcnt lgkmcnt(0)")
    a(f"ds_read_b128 v[72:75], v2 offset:{H_LDS}")
    if defer:
        lds_spin(F_ISS, 8)
        w2_loads()
    B2 = 76
    for p in range(4):
        a(f"s_waitcnt vmcnt({6-2*p})")
        r0 = W2 + 8 * p; r1 = r0 + 4
        for x in range(4):
            a(f"v_perm_b32 v{B2+4*(2*x)+p}, v{r1+x}, v{r0+x}, s76")
            a(f"v_perm_b32 v{B2+4*(2*x+1)+p}, v{r1+x}, v{r0+x}, s77")
    a("s_waitcnt lgkmcnt(0)")
    for j in range(8):
        b = B2 + 4 * j
        a(f"v_mfma_f32_16x16x32_bf16 v[{b}:{b+3}], v[72:75], v[{b}:{b+3}], 0")
    for j in range(8): a(f"v_mov_b32 v{8+j}, v{B2+4*j}")
    a("s_branch L_h1_out")
    a("L_h1_none:")
    for j in range(8): a(f"v_mov_b32 v{8+j}, 0")
    a("L_h1_out:")
    a("v_lshlrev_b32 v2, 4, v0")
    a(f"ds_write_b128 v2, v[8:11] offset:{W2R}"); a(f"ds_write_b128 v2, v[12:15] offset:{W2R+1024}")
    a("s_waitcnt lgkmcnt(0)")
    lds_add(F_W2)
    stamp(4)
    stamp_out(3, 5)
    a("s_endpgm")

    a("L_h2:")
    lds_add(F_CNT)
    srd(44, 24, 0x400000)
    srd(52, 34, 4096)
    a("v_lshlrev_b32 v2, 13, v7"); a("v_lshl_add_u32 v2, v1, 4, v2")
    a("s_lshl_b32 s12, s95, 16"); a("s_lshl_b32 s4, s96, 8"); a("s_add_u32 s12, s12, s4")
    a("s_add_u32 s13, s12, 4096"); a("s_add_u32 s14, s12, 32768"); a("s_add_u32 s15, s12, 36864")
    a("s_bfe_u32 s4, s2, 0x20002"); a("s_lshl_b32 s86, s4, 10")
    a("s_and_b32 s4, s2, 3"); a("s_lshl_b32 s4, s4, 8"); a("s_add_u32 s86, s86, s4")
    a("s_lshl_b32 s4, s96, 6"); a("s_add_u32 s86, s86, s4")
    a("s_bfe_u32 s4, s2, 0x20004"); a("s_lshl_b32 s4, s4, 2"); a("s_add_u32 s86, s86, s4")
    a("v_and_b32 v40, 3, v0"); a("v_lshlrev_b32 v40, 4, v40")
    a("buffer_load_dword v41, v40, s[48:51], s86 offen")
    a("v_lshlrev_b32 v44, 10, v7"); a("v_lshl_add_u32 v44, v1, 4, v44")
    a("s_lshl_b32 s87, s2, 12"); a(f"s_add_u32 s87, s87, {OP:#x}")
    if opts.get("pretouch", 1):
        a("s_mov_b64 exec, 1")
        a("buffer_load_dword v42, v5, s[56:59], s87 offen")
        a("buffer_load_dword v43, v5, s[52:55], s86 offen")
        a("s_mov_b64 exec, -1")
    def wo_loads():
        for u in range(2):
            for i in range(8):
                r = (8 if u == 0 else 104) + 4 * i
                a(f"buffer_load_dwordx4 v[{r}:{r+3}], v2, s[44:47], s{12+2*u+(i>>2)} offen offset:{(i&3)*1024} nt")
    if not defer: wo_loads()
    a("v_lshrrev_b32 v47, 2, v1"); a("v_lshlrev_b32 v47, 7, v47"); a("v_lshl_add_u32 v47, v7, 4, v47")
    a("v_lshrrev_b32 v45, 2, v0"); a("v_lshl_add_u32 v45, v45, 12, v40")
    a("s_and_b32 s4, s2, 3"); a("s_lshl_b32 s88, s4, 18"); a("s_bfe_u32 s4, s2, 0x20002"); a("s_lshl_b32 s4, s4, 10"); a("s_add_u32 s88, s88, s4")
    a("s_bfe_u32 s4, s2, 0x20004"); a("s_lshl_b32 s4, s4, 8"); a("s_add_u32 s88, s88, s4"); a("s_lshl_b32 s4, s96, 6"); a("s_add_u32 s88, s88, s4"); a(f"s_add_u32 s88, s88, {OP:#x}")
    for t in range(1, 4): a(f"s_add_u32 s{88+t}, s88, {65536*t}")
    a("v_lshlrev_b32 v46, 4, v0")
    if defer:
        lds_spin(F_ISS, 8)
        wo_loads()
    B0, B1 = 72, 8
    for p in range(4):
        a(f"s_waitcnt vmcnt({14-2*p})")
        r0 = 8 + 8 * p; r1 = r0 + 4
        for x in range(4):
            a(f"v_perm_b32 v{B0+4*(2*x)+p}, v{r1+x}, v{r0+x}, s76")
            a(f"v_perm_b32 v{B0+4*(2*x+1)+p}, v{r1+x}, v{r0+x}, s77")
    for p in range(4):
        a(f"s_waitcnt vmcnt({6-2*p})")
        r0 = 104 + 8 * p; r1 = r0 + 4
        for x in range(4):
            a(f"v_perm_b32 v{B1+4*(2*x)+p}, v{r1+x}, v{r0+x}, s76")
            a(f"v_perm_b32 v{B1+4*(2*x+1)+p}, v{r1+x}, v{r0+x}, s77")
    lds_spin(F_W2, 1)
    a(f"ds_read_b128 v[48:51], v46 offset:{W2R}"); a(f"ds_read_b128 v[52:55], v46 offset:{W2R+1024}")
    for jp in range(4): a(f"v_mov_b32 v{106+4*jp}, s42"); a(f"v_mov_b32 v{107+4*jp}, s43")
    a("v_lshlrev_b32 v56, 16, v41"); a("v_and_b32 v57, s81, v41")
    stamp(2)
    lds_spin(F_O, 4, sleep=0)
    stamp(3)
    a(f"ds_read_b128 v[64:67], v47 offset:{O_LDS}"); a(f"ds_read_b128 v[68:71], v47 offset:{O_LDS+64}")
    a("s_waitcnt lgkmcnt(0)")
    for j in range(8):
        d = B0 + 4 * j
        a(f"v_mfma_f32_16x16x32_bf16 v[{d}:{d+3}], v[64:67], v[{d}:{d+3}], 0")
    for j in range(8):
        d = B0 + 4 * j; b = B1 + 4 * j
        a(f"v_mfma_f32_16x16x32_bf16 v[{d}:{d+3}], v[68:71], v[{b}:{b+3}], v[{d}:{d+3}]")
    for jp in range(4):
        a(f"v_add_f32 v{104+4*jp}, v{B0+8*jp}, v{48+2*jp}"); a(f"v_add_f32 v{105+4*jp}, v{B0+8*jp+4}, v{49+2*jp}")
        a(f"buffer_store_dwordx4 v[{104+4*jp}:{107+4*jp}], v44, s[56:59], s87 offen offset:{256*jp} sc1")
    stamp(4)
    GF = [120 + 4 * t for t in range(4)]
    mpoll("op", [f"buffer_load_dwordx4 v[{GF[t]}:{GF[t]+3}], v45, s[56:59], s{88+t} offen sc1" for t in range(4)], GF,
          sleep=opts.get("op_sleep", 0), st_cnt=7)
    stamp(5)
    for e in range(2):
        a(f"v_add_f32 v{GF[0]+e}, v{GF[0]+e}, v{GF[1]+e}"); a(f"v_add_f32 v{GF[2]+e}, v{GF[2]+e}, v{GF[3]+e}")
    for e in range(2): a(f"v_add_f32 v{GF[0]+e}, v{GF[0]+e}, v{GF[2]+e}")
    for ror in (4, 8):
        for e in range(2): a(f"v_add_f32_dpp v{GF[0]+e}, v{GF[0]+e}, v{GF[0]+e} row_ror:{ror} {DPPM}")
    for which in (16, 32): xswap("v_add_f32", [GF[0], GF[0] + 1], [GF[1], GF[1] + 1], which)
    a(f"v_add_f32 v56, v56, v{GF[0]}"); a(f"v_add_f32 v57, v57, v{GF[0]+1}")
    a("v_cvt_pk_bf16_f32 v46, v56, v57")
    a("s_mov_b64 exec, 0xf")
    a("buffer_store_dword v46, v40, s[52:55], s86 offen")
    a("s_cmp_lg_u32 s2, 0"); a("s_cbranch_scc1 L_h2_fin")
    a("s_mov_b64 exec, 1")
    a("v_mov_b32 v46, s42"); a("v_mov_b32 v47, s43")
    a("buffer_store_dwordx2 v[46:47], v5, s[56:59], 0 offen sc1")
    a("L_h2_fin:")
    a("s_mov_b64 exec, -1")
    stamp(6)
    stamp_out(4, 8)
    a("L_end:")
    a("s_endpgm")
    a("L_code_end:")
    a('.section .rodata,"a"'); a(".p2align 6"); a(f".amdhsa_kernel {NAME}_kernel")
    for l in (".amdhsa_next_free_vgpr 168", ".amdhsa_next_free_sgpr 102", ".amdhsa_accum_offset 168", ".amdhsa_group_segment_fixed_size 0",
              ".amdhsa_kernarg_size 96", ".amdhsa_user_sgpr_count 2", ".amdhsa_user_sgpr_kernarg_segment_ptr 1", ".amdhsa_system_sgpr_workgroup_id_x 1"):
        a("  " + l)
    a(".end_amdhsa_kernel")
    open(out, "w").write(a.finalize())
    if opts.get("cpf", 1) and "_pcoff" not in opts:
        import subprocess
        subprocess.run(["clang", "-x", "assembler", "-target", "amdgcn-amd-amdhsa", "-mcpu=gfx950", "-c", out, "-o", "_g.o"], check=True)
        nm = subprocess.run(["llvm-objdump", "-t", "_g.o"], capture_output=True, text=True).stdout
        sym = {l.split()[-1]: int(l.split()[0], 16) for l in nm.splitlines() if ".text" in l and l[:8] == "00000000"}
        o2 = dict(opts); o2["_pcoff"] = sym["L_pcbase"] & 0xffffff00; o2["_csize"] = sym["L_code_end"]
        assert o2["_pcoff"] > 64 and o2["_csize"] > 64
        gen(out, stamps, o2)

if __name__ == "__main__":
    gen("k_v8.s"); gen("k_v8s.s", stamps=True)
    gen("k_v8p.s", stamps=True, opts=dict(prof=1))
    gen("k_v8p_nc.s", stamps=True, opts=dict(prof=1, cpf=0))
```

```python
import sys, struct
from asmlib import Asm
NAME = "parallel_sum__gqa_block_cached__glu_gated_swiglu__decode"

def f2u(x): return struct.unpack("<I", struct.pack("<f", x))[0]

QP = 0x10000
XP = 0x100000
AP = 0x200000
OP = 0x300000
STAMP = 0x8000000
F_Q, F_CNT, F_ISS, F_W2, F_O, F_S1, F_XN = 0, 4, 8, 12, 16, 20, 24
Q_LDS = 256
ML_LDS = 1280
H_LDS = 1536
O_LDS = 1792
W2R = 2304
OPART = 4352
PS = 272
WSTR = 8 * PS
S1X = OPART + 8 * WSTR
XN_LDS = S1X + 3072
LDS_BYTES = XN_LDS + 4096
BOUND = 2000000

def gen(out, stamps=False, opts=None):
    opts = opts or {}
    defer = opts.get("defer", True)
    a = Asm()
    hdr = open("cdna_kernels/%s.s.ref" % NAME).read().split("; Override launch")[0]
    a.lines += hdr.strip("\n").split("\n")
    a(f"; @launch grid=(256,1,1) block=(768,1,1) lds={LDS_BYTES}")
    a('.amdgcn_target "amdgcn-amd-amdhsa--gfx950"')
    a(".text"); a(f".globl {NAME}_kernel"); a(".p2align 8"); a(f".type {NAME}_kernel,@function"); a(f"{NAME}_kernel:")
    def stamp(k):
        if stamps: a(f"s_memrealtime s[{60+2*k}:{61+2*k}]")
    def stamp_out(role, n):
        if not stamps: return
        a("s_waitcnt lgkmcnt(0)")
        a("s_mov_b64 exec, 1")
        a(f"s_mul_i32 s4, s2, {16*8*8}")
        a(f"s_add_u32 s4, s4, {STAMP + role*64}")
        a("v_mov_b32 v1, s4")
        for k in range(n):
            a(f"v_mov_b32 v2, s{60+2*k}"); a(f"v_mov_b32 v3, s{61+2*k}")
            a(f"buffer_store_dwordx2 v[2:3], v1, s[56:59], 0 offen offset:{8*k}")
        a("s_mov_b64 exec, -1")
    def srd(d, lo, size):
        a(f"s_mov_b32 s{d}, s{lo}"); a(f"s_mov_b32 s{d+1}, s{lo+1}"); a(f"s_mov_b32 s{d+2}, {size:#x}"); a(f"s_mov_b32 s{d+3}, 0x20000")
    uid = [0]
    def lds_spin(off, val, sleep=2):
        uid[0] += 1; L = f"L_spin{uid[0]}"
        a("s_mov_b32 s5, 0")
        a(f"{L}:")
        a(f"ds_read_b32 v4, v5 offset:{off}")
        a("s_waitcnt lgkmcnt(0)")
        a("v_readfirstlane_b32 s4, v4")
        a(f"s_cmp_ge_u32 s4, {val}")
        a(f"s_cbranch_scc1 {L}_done")
        if sleep: a(f"s_sleep {sleep}")
        a("s_add_u32 s5, s5, 1")
        a(f"s_cmp_lt_u32 s5, {BOUND*4}")
        a(f"s_cbranch_scc1 {L}")
        a(f"{L}_done:")
    def lds_add(off):
        a("s_mov_b64 exec, 1")
        a(f"ds_add_u32 v5, v6 offset:{off}")
        a("s_mov_b64 exec, -1")
    def xswap(op, regs, tmps, which):
        for r, t in zip(regs, tmps): a(f"v_mov_b32 v{t}, v{r}")
        for r, t in zip(regs, tmps): a(f"v_permlane{which}_swap_b32 v{r}, v{t}")
        for r, t in zip(regs, tmps): a(f"{op} v{r}, v{r}, v{t}")
    def xreduce(op, r, t):
        xswap(op, [r], [t], 16); xswap(op, [r], [t], 32)
    DPPM = "row_mask:0xf bank_mask:0xf"
    def bf16r(r):
        a(f"v_cvt_pk_bf16_f32 v{r}, v{r}, v{r}"); a(f"v_lshlrev_b32 v{r}, 16, v{r}")
    def tag_wait():
        a("s_waitcnt lgkmcnt(0)")
        a("s_add_u32 s42, s40, 1"); a("s_addc_u32 s43, s41, 0")
    MASKS = [16 + 2 * t for t in range(12)] + [84 + 2 * t for t in range(4)]
    def mpoll(name, loads, regs, sleep=0, st_cnt=None):
        n = len(loads)
        a("s_mov_b32 s9, 0")
        for t in range(n): a(loads[t])
        a(f"L_{name}:")
        a("s_waitcnt vmcnt(0)")
        for t in range(n):
            m = MASKS[t]
            a(f"v_cmp_ne_u64 s[{m}:{m+1}], v[{regs[t]+2}:{regs[t]+3}], s[42:43]")
        if n == 1: a(f"s_mov_b64 s[6:7], s[{MASKS[0]}:{MASKS[0]+1}]")
        else: a(f"s_or_b64 s[6:7], s[{MASKS[0]}:{MASKS[0]+1}], s[{MASKS[1]}:{MASKS[1]+1}]")
        for t in range(2, n): a(f"s_or_b64 s[6:7], s[6:7], s[{MASKS[t]}:{MASKS[t]+1}]")
        a("s_cmp_eq_u64 s[6:7], 0"); a(f"s_cbranch_scc1 L_{name}_done")
        a("s_add_u32 s9, s9, 1"); a(f"s_cmp_ge_u32 s9, {BOUND}"); a(f"s_cbranch_scc1 L_{name}_done")
        if sleep: a(f"s_sleep {sleep}")
        for t in range(n):
            m = MASKS[t]
            a(f"s_mov_b64 exec, s[{m}:{m+1}]")
            a(f"s_cbranch_execz L_{name}_sk{t}")
            a(loads[t])
            a(f"L_{name}_sk{t}:")
        a("s_mov_b64 exec, -1")
        a(f"s_branch L_{name}")
        a(f"L_{name}_done:")
        if stamps and st_cnt is not None:
            a("s_waitcnt lgkmcnt(0)")
            a(f"s_mul_i32 s4, s9, 100"); a(f"s_add_u32 s{60+2*st_cnt}, s60, s4"); a(f"s_addc_u32 s{61+2*st_cnt}, s61, 0")

    a("s_cmp_ge_u32 s2, 256"); a("s_cbranch_scc1 L_end")
    stamp(0)
    if opts.get("dbgspan"): a("s_memrealtime s[74:75]")
    a("s_load_dwordx16 s[16:31], s[0:1], 0")
    a("s_load_dwordx8 s[32:39], s[0:1], 64")
    a("v_lshrrev_b32 v1, 6, v0")
    a("v_and_b32 v0, 63, v0")
    a("v_readfirstlane_b32 s3, v1")
    a("v_mov_b32 v5, 0"); a("v_mov_b32 v6, 1")
    a("s_mov_b32 s76, 0x05040100"); a("s_mov_b32 s77, 0x07060302")
    a(f"s_mov_b32 s78, {f2u(1.4426950408889634):#x}")
    a(f"s_mov_b32 s79, {f2u(128 ** -0.5):#x}")
    a(f"s_mov_b32 s80, {f2u(-1.4426950408889634):#x}")
    a("s_mov_b32 s81, 0xffff0000")
    a("v_lshlrev_b32 v2, 2, v0"); a("s_mov_b64 exec, 0xff"); a("ds_write_b32 v2, v5"); a("s_mov_b64 exec, -1")
    a("v_and_b32 v1, 15, v0")
    a("v_lshrrev_b32 v7, 4, v0")
    a("s_bfe_u32 s92, s2, 0x30003"); a("s_lshr_b32 s93, s2, 6"); a("s_and_b32 s94, s2, 7"); a("s_and_b32 s95, s2, 63"); a("s_lshr_b32 s96, s2, 6")
    a("s_waitcnt lgkmcnt(0)")
    a("s_load_dwordx2 s[40:41], s[38:39], 0")
    srd(56, 38, 0x10000000)
    a("s_cmp_ge_u32 s3, 8"); a("s_cbranch_scc1 L_helper")

    KR, VR, QB, PR = 8, 72, 136, 140
    srd(44, 18, 0x2000000); srd(48, 20, 0x2000000)
    a("s_lshl_b32 s52, s93, 6"); a("s_lshl_b32 s4, s92, 3"); a("s_add_u32 s52, s52, s4"); a("s_add_u32 s52, s52, s94")
    a("s_lshl_b32 s52, s52, 17"); a("s_lshl_b32 s4, s3, 14"); a("s_add_u32 s52, s52, s4")
    a("s_add_u32 s53, s52, 4096"); a("s_add_u32 s54, s52, 8192"); a("s_add_u32 s55, s52, 12288")
    a("v_lshrrev_b32 v2, 2, v1"); a("v_lshlrev_b32 v2, 8, v2"); a("v_lshl_add_u32 v2, v7, 6, v2")
    a("v_and_b32 v3, 3, v1"); a("v_lshl_add_u32 v2, v3, 4, v2")
    a("v_lshlrev_b32 v3, 4, v0")
    thr = [opts.get("thr", 3)]
    thr2 = opts.get("thr2", 8)
    QW = opts.get("qw", 8)
    nld = [0]
    def ld(kind, i):
        if kind == "V" and i >= QW: thr[0] = thr2
        if nld[0] >= thr[0]: a(f"s_waitcnt vmcnt({thr[0]-1})")
        nld[0] += 1
        if kind == "K": a(f"buffer_load_dwordx4 v[{KR+4*i}:{KR+4*i+3}], v2, s[44:47], s{52+(i>>2)} offen offset:{(i&3)*1024} nt")
        else: a(f"buffer_load_dwordx4 v[{VR+4*i}:{VR+4*i+3}], v3, s[48:51], s{52+(i>>2)} offen offset:{(i&3)*1024} nt")
    for i in range(16):
        if i == thr[0]:
            a("s_barrier")
            if opts.get("prof"): stamp(5)
        ld("K", i)
        if opts.get("prof") and i == 7: stamp(6)
    if opts.get("prof"): stamp(7)
    for i in range(QW): ld("V", i)
    stamp(1)
    tag_wait()
    lds_spin(F_Q, 1)
    stamp(2)
    a(f"ds_read_b128 v[{QB}:{QB+3}], v2 offset:{Q_LDS}")
    vnext = [QW]
    def nextv():
        if vnext[0] < 16:
            ld("V", vnext[0]); vnext[0] += 1
            if vnext[0] == opts.get("isspt", 16): lds_add(F_ISS)
    nextv()
    if QW + 1 < thr2: a(f"s_waitcnt vmcnt({QW+1})")
    a("s_waitcnt lgkmcnt(0)")
    for i in range(16):
        k = KR + 4 * i
        a(f"v_mfma_f32_16x16x32_bf16 v[{k}:{k+3}], v[{k}:{k+3}], v[{QB}:{QB+3}], 0")
    nextv()
    for grp in range(4):
        for c in range(4):
            for i in range(grp * 4, grp * 4 + 4):
                k = KR + 4 * i
                if c == 0: a(f"v_mov_b32_dpp v{k}, v{k} quad_perm:[0,0,0,0] {DPPM}")
                else: a(f"v_add_f32_dpp v{k}, v{k+c}, v{k} quad_perm:[{c},{c},{c},{c}] {DPPM}")
    nextv()
    T = [KR + 4 * i for i in range(16)]
    for step in range(5):
        for i in range(0, 16, 2):
            t0, t1, pk = T[i], T[i + 1], T[i] + 1
            if step == 0: a(f"v_cvt_pk_bf16_f32 v{pk}, v{t0}, v{t1}")
            if step == 1: a(f"v_lshlrev_b32 v{t0}, 16, v{pk}"); a(f"v_and_b32 v{t1}, s81, v{pk}")
            if step == 2: a(f"v_mul_f32 v{t0}, s79, v{t0}"); a(f"v_mul_f32 v{t1}, s79, v{t1}")
            if step == 3: a(f"v_cvt_pk_bf16_f32 v{pk}, v{t0}, v{t1}")
            if step == 4: a(f"v_lshlrev_b32 v{t0}, 16, v{pk}"); a(f"v_and_b32 v{t1}, s81, v{pk}")
    nextv()
    M, Lr, TMP, NM = 148, 149, 150, 151
    a(f"v_max3_f32 v{M}, v{T[0]}, v{T[1]}, v{T[2]}")
    a(f"v_max3_f32 v{TMP}, v{T[3]}, v{T[4]}, v{T[5]}")
    a(f"v_max3_f32 v{M}, v{M}, v{T[6]}, v{T[7]}")
    a(f"v_max3_f32 v{TMP}, v{TMP}, v{T[8]}, v{T[9]}")
    a(f"v_max3_f32 v{M}, v{M}, v{T[10]}, v{T[11]}")
    a(f"v_max3_f32 v{TMP}, v{TMP}, v{T[12]}, v{T[13]}")
    a(f"v_max3_f32 v{M}, v{M}, v{T[14]}, v{T[15]}")
    a(f"v_max_f32 v{M}, v{M}, v{TMP}")
    xreduce("v_max_f32", M, TMP)
    a(f"v_mul_f32 v{NM}, s80, v{M}")
    for i in range(16): a(f"v_fma_f32 v{T[i]}, v{T[i]}, s78, v{NM}")
    for i in range(16): a(f"v_exp_f32 v{T[i]}, v{T[i]}")
    nextv()
    for k in range(8): a(f"v_cvt_pk_bf16_f32 v{PR+k}, v{T[2*k]}, v{T[2*k+1]}")
    a(f"v_add_f32 v{Lr}, v{T[0]}, v{T[1]}"); a(f"v_add_f32 v{TMP}, v{T[2]}, v{T[3]}")
    for i in range(4, 16, 2):
        a(f"v_add_f32 v{Lr}, v{Lr}, v{T[i]}"); a(f"v_add_f32 v{TMP}, v{TMP}, v{T[i+1]}")
    a(f"v_add_f32 v{Lr}, v{Lr}, v{TMP}")
    xreduce("v_add_f32", Lr, TMP)
    a(f"s_mul_i32 s4, s3, {WSTR}")
    a(f"v_lshl_add_u32 v152, v0, 2, s4")
    a("v_lshrrev_b32 v153, 2, v0"); a("v_lshlrev_b32 v153, 6, v153"); a("s_lshl_b32 s4, s3, 3"); a("v_add_u32 v153, s4, v153")
    a("s_mov_b64 exec, 0x1111")
    a(f"ds_write_b64 v153, v[{M}:{M+1}] offset:{ML_LDS}")
    a("s_mov_b64 exec, -1")
    stamp(3)
    nextv()
    DO = 40
    BOs = (8, VR)
    def vwait(i):
        outstanding_after = vnext[0] - 1 - i
        if outstanding_after < thr[0]: a(f"s_waitcnt vmcnt({outstanding_after})")
    def perms(u, p):
        BO = BOs[u]
        i = 8 * u + 2 * p
        vwait(i + 1)
        r0, r1 = VR + 4 * i, VR + 4 * (i + 1)
        for x in range(4):
            a(f"v_perm_b32 v{BO+4*(2*x)+p}, v{r1+x}, v{r0+x}, s76")
            a(f"v_perm_b32 v{BO+4*(2*x+1)+p}, v{r1+x}, v{r0+x}, s77")
    def mfmas(u):
        for j in range(8):
            d = DO + 4 * j; b = BOs[u] + 4 * j
            c = "0" if u == 0 else f"v[{d}:{d+3}]"
            a(f"v_mfma_f32_16x16x32_bf16 v[{d}:{d+3}], v[{PR+4*u}:{PR+4*u+3}], v[{b}:{b+3}], {c}")
    nextv(); nextv()
    while vnext[0] < 16: nextv()
    for p in range(4): perms(0, p)
    mfmas(0)
    a("v_and_b32 v154, 31, v0")
    a("v_lshrrev_b32 v155, 5, v0")
    a("s_cmp_ge_u32 s3, 4"); a("s_cbranch_scc1 L_pre_hi")
    a(f"v_and_b32 v156, 3, v154"); a(f"v_mul_u32_u24 v156, {2*PS}, v156")
    a("v_lshrrev_b32 v157, 2, v154"); a("v_lshl_add_u32 v157, v155, 3, v157"); a("s_lshl_b32 s4, s3, 4"); a("v_add_u32 v157, s4, v157")
    a("v_lshl_add_u32 v156, v157, 2, v156")
    a("s_lshl_b32 s4, s3, 6"); a("v_mov_b32 v157, s4")
    a("v_lshlrev_b32 v158, 14, v155"); a("v_lshl_add_u32 v158, v154, 4, v158")
    a("s_lshl_b32 s4, s92, 2"); a("s_add_u32 s4, s4, s3"); a("s_lshl_b32 s8, s4, 15")
    a("s_lshl_b32 s4, s93, 12"); a("s_add_u32 s8, s8, s4")
    a("s_lshl_b32 s4, s94, 9"); a("s_add_u32 s8, s8, s4"); a(f"s_add_u32 s8, s8, {AP:#x}")
    a("v_mov_b32 v162, s42"); a("v_mov_b32 v163, s43")
    a("s_branch L_pre_done")
    a("L_pre_hi:")
    a("v_lshlrev_b32 v158, 11, v155"); a("v_lshl_add_u32 v158, v154, 4, v158")
    a("s_lshl_b32 s8, s95, 14"); a("s_sub_u32 s4, s3, 4"); a("s_lshl_b32 s10, s4, 12"); a("s_add_u32 s8, s8, s10"); a(f"s_add_u32 s8, s8, {AP:#x}")
    a("s_lshl_b32 s4, s4, 7"); a("v_lshl_add_u32 v156, v154, 2, s4")
    a("L_pre_done:")
    for p in range(4): perms(1, p)
    mfmas(1)
    stamp(4)
    for j in range(8):
        a(f"ds_write_b32 v152, v{DO+4*j} offset:{OPART + j*PS}")
    a("s_waitcnt lgkmcnt(0)")
    lds_add(F_CNT)
    a("s_cmp_ge_u32 s3, 4"); a("s_cbranch_scc1 L_poller")
    lds_spin(F_CNT, 10, sleep=0)
    if not opts.get("prof"): stamp(5)
    for q in range(4): a(f"ds_read_b128 v[{16+4*q}:{19+4*q}], v157 offset:{ML_LDS + 16*q}")
    for w in range(8):
        a(f"ds_read_b32 v{32+2*w}, v156 offset:{OPART + w*WSTR}")
        a(f"ds_read_b32 v{33+2*w}, v156 offset:{OPART + w*WSTR + PS}")
    a("s_waitcnt lgkmcnt(15)")
    a("s_waitcnt lgkmcnt(0)") if stamps else None
    ms = [16 + 2 * w for w in range(8)]
    a(f"v_max3_f32 v48, v{ms[0]}, v{ms[1]}, v{ms[2]}"); a(f"v_max3_f32 v49, v{ms[3]}, v{ms[4]}, v{ms[5]}")
    a(f"v_max3_f32 v48, v48, v{ms[6]}, v{ms[7]}"); a("v_max_f32 v48, v48, v49")
    a("v_mul_f32 v49, s80, v48")
    for w in range(8): a(f"v_fma_f32 v{ms[w]}, v{ms[w]}, s78, v49")
    for w in range(8): a(f"v_exp_f32 v{ms[w]}, v{ms[w]}")
    a(f"v_mul_f32 v50, v{ms[0]}, v{ms[0]+1}")
    for w in range(1, 8): a(f"v_fmac_f32 v50, v{ms[w]}, v{ms[w]+1}")
    a("v_rcp_f32 v53, v50"); a("v_log_f32 v54, v50")
    a("s_waitcnt lgkmcnt(0)")
    a(f"v_mul_f32 v51, v{ms[0]}, v32"); a(f"v_mul_f32 v52, v{ms[0]}, v33")
    for w in range(1, 8):
        a(f"v_fmac_f32 v51, v{ms[w]}, v{32+2*w}"); a(f"v_fmac_f32 v52, v{ms[w]}, v{33+2*w}")
    a("v_sub_f32 v161, v54, v49")
    a("v_mul_f32 v51, v51, v53"); a("v_mul_f32 v52, v52, v53")
    a("v_cvt_pk_bf16_f32 v160, v51, v52")
    a("buffer_store_dwordx4 v[160:163], v158, s[56:59], s8 offen sc1")
    if not opts.get("prof"): stamp(6)
    if stamps:
        a("s_cmp_eq_u32 s3, 0"); a("s_cbranch_scc0 L_end")
        stamp_out(0, 8)
    a("s_endpgm")
    a("L_poller:")
    G4 = [8 + 4 * t for t in range(4)]
    mpoll("ap", [f"buffer_load_dwordx4 v[{G4[t]}:{G4[t]+3}], v158, s[56:59], s8 offen offset:{t*512} sc1" for t in range(4)], G4,
          sleep=opts.get("ap_sleep", 1), st_cnt=None if opts.get("prof") else 7)
    if not opts.get("prof"): stamp(5)
    a(f"v_max3_f32 v24, v{G4[0]+1}, v{G4[1]+1}, v{G4[2]+1}"); a(f"v_max_f32 v24, v24, v{G4[3]+1}")
    xswap("v_max_f32", [24], [25], 32)
    for t in range(4): a(f"v_sub_f32 v{G4[t]+1}, v{G4[t]+1}, v24")
    for t in range(4): a(f"v_exp_f32 v{G4[t]+1}, v{G4[t]+1}")
    for t in range(4): a(f"v_lshlrev_b32 v{G4[t]+2}, 16, v{G4[t]}"); a(f"v_and_b32 v{G4[t]+3}, s81, v{G4[t]}")
    a(f"v_add_f32 v26, v{G4[0]+1}, v{G4[1]+1}"); a(f"v_mul_f32 v27, v{G4[0]+1}, v{G4[0]+2}"); a(f"v_mul_f32 v28, v{G4[0]+1}, v{G4[0]+3}")
    a(f"v_fmac_f32 v27, v{G4[1]+1}, v{G4[1]+2}"); a(f"v_fmac_f32 v28, v{G4[1]+1}, v{G4[1]+3}")
    for t in (2, 3):
        a(f"v_add_f32 v26, v26, v{G4[t]+1}"); a(f"v_fmac_f32 v27, v{G4[t]+1}, v{G4[t]+2}"); a(f"v_fmac_f32 v28, v{G4[t]+1}, v{G4[t]+3}")
    xswap("v_add_f32", [26, 27, 28], [29, 30, 31], 32)
    a("v_rcp_f32 v26, v26")
    a("v_mul_f32 v27, v27, v26"); a("v_mul_f32 v28, v28, v26")
    a("v_cvt_pk_bf16_f32 v27, v27, v28")
    a(f"ds_write_b32 v156, v27 offset:{O_LDS}")
    a("s_waitcnt lgkmcnt(0)")
    lds_add(F_O)
    if not opts.get("prof"): stamp(6)
    if stamps:
        a("s_cmp_eq_u32 s3, 7"); a("s_cbranch_scc0 L_end")
        stamp_out(1, 8)
    a("s_endpgm")

    a("L_helper:")
    a("s_barrier")
    a("s_setprio 3")
    if opts.get("cpf", 1):
        a("s_cmp_lg_u32 s3, 11"); a("s_cbranch_scc1 L_nocpf")
        a("s_getpc_b64 s[100:101]")
        a("L_pcbase:")
        a("s_and_b32 s100, s100, 0xffffff00")
        a(f"s_sub_u32 s100, s100, {opts.get('_pcoff', 0x1000):#x}"); a("s_subb_u32 s101, s101, 0")
        a("s_lshr_b32 s4, s2, 3"); a("s_and_b32 s4, s4, 7"); a("s_lshl_b32 s4, s4, 12")
        a("v_lshl_add_u32 v2, v0, 6, s4")
        a(f"v_cmp_gt_u32 vcc, {opts.get('_csize', 0x1000):#x}, v2")
        a("s_and_saveexec_b64 s[6:7], vcc")
        a("s_cbranch_execz L_cpf_x")
        a("global_load_dword v160, v2, s[100:101]")
        a("L_cpf_x:")
        a("s_mov_b64 exec, -1")
        a("L_nocpf:")
    srd(48, 16, 4096)
    a("s_sub_u32 s10, s3, 8")
    XS, XO, WT, BT, ACC = 8, 24, 40, 104, 120
    a("s_cmp_ge_u32 s2, 240"); a("s_cbranch_scc1 L_s1_skip")
    a("s_lshr_b32 s97, s2, 4"); a("s_lshl_b32 s97, s97, 3"); a("s_add_u32 s97, s97, s94"); a("s_bfe_u32 s83, s2, 0x10003")
    a("s_mov_b32 s44, s22"); a("s_mov_b32 s45, s23"); a("s_mov_b32 s46, 0x400000"); a("s_mov_b32 s98, 8192"); a("s_lshl_b32 s11, s97, 7")
    a("s_cmp_lt_u32 s2, 128"); a("s_cbranch_scc1 L_s1_sel")
    a("s_mov_b32 s44, s28"); a("s_mov_b32 s45, s29"); a(f"s_mov_b32 s46, {512*3584:#x}"); a("s_mov_b32 s98, 3584"); a("s_sub_u32 s4, s97, 64"); a("s_lshl_b32 s11, s4, 7")
    a("s_cmp_lt_u32 s97, 92"); a("s_cbranch_scc1 L_s1_sel")
    a("s_mov_b32 s44, s30"); a("s_mov_b32 s45, s31"); a("s_sub_u32 s4, s97, 92"); a("s_lshl_b32 s11, s4, 7")
    a("L_s1_sel:")
    a("s_mov_b32 s47, 0x20000")
    a("v_lshrrev_b32 v2, 2, v1"); a("v_lshlrev_b32 v2, 10, v2")
    a("s_lshl_b32 s82, s83, 2"); a("s_add_u32 s82, s82, s10")
    a("s_cmp_lg_u32 s10, 0"); a("s_cbranch_scc1 L_s1_nox")
    a("v_and_b32 v34, 3, v0"); a("v_lshl_add_u32 v34, v7, 2, v34"); a("v_lshl_add_u32 v34, v34, 6, v2")
    for q in range(4): a(f"buffer_load_dwordx4 v[{XS+4*q}:{XS+4*q+3}], v34, s[48:51], 0 offen offset:{16*q}")
    a("L_s1_nox:")
    a("s_lshl_b32 s4, s98, 3"); a("v_mul_lo_u32 v3, v7, s4"); a("v_lshl_add_u32 v3, v1, 3, v3")
    a("s_lshl_b32 s4, s98, 6"); a("s_mul_i32 s8, s82, s4"); a("s_add_u32 s8, s8, s11")
    a("s_mul_i32 s99, s98, 25")
    for su in range(2):
        for i in range(8):
            r = WT + (su * 8 + i) * 2
            a(f"buffer_load_dwordx2 v[{r}:{r+1}], v3, s[44:47], s8 offen nt")
            if not (su == 1 and i == 7): a(f"s_add_u32 s8, s8, s{98 if i < 7 else 99}")
    a("v_lshl_add_u32 v35, v7, 4, v2"); a("s_lshl_b32 s4, s82, 7"); a("v_add_u32 v35, s4, v35")
    a("s_cmp_lg_u32 s10, 0"); a("s_cbranch_scc1 L_s1_wxn")
    U = 104
    U2 = 72
    a(f"s_waitcnt vmcnt(16)")
    for k in range(16):
        a(f"v_lshlrev_b32 v{U+2*k}, 16, v{XS+k}"); a(f"v_and_b32 v{U+2*k+1}, s81, v{XS+k}")
    S0, S1, S2, S3, TT = 24, 25, 26, 27, 28
    for ci, sreg in enumerate((S0, S1, S2, S3)):
        a(f"v_add_f32 v{sreg}, v{U+ci}, v{U+4+ci}")
    for k in range(8, 32):
        sreg = (S0, S1, S2, S3)[k & 3]
        a(f"v_add_f32 v{sreg}, v{sreg}, v{U+k}")
    a(f"v_add_f32 v{S0}, v{S0}, v{S1}"); a(f"v_add_f32 v{S2}, v{S2}, v{S3}"); a(f"v_add_f32 v{S0}, v{S0}, v{S2}")
    def lred(r):
        a(f"v_add_f32_dpp v{r}, v{r}, v{r} quad_perm:[1,0,3,2] {DPPM}")
        a(f"v_add_f32_dpp v{r}, v{r}, v{r} quad_perm:[2,3,0,1] {DPPM}")
        xreduce("v_add_f32", r, TT)
    lred(S0)
    MEAN = 29
    a(f"v_mul_f32 v{MEAN}, {f2u(1.0/512):#x}, v{S0}")
    for k in range(32): a(f"v_sub_f32 v{U2+k}, v{U+k}, v{MEAN}")
    for ci, sreg in enumerate((S0, S1, S2, S3)): a(f"v_mul_f32 v{sreg}, v{U2+ci}, v{U2+ci}")
    for k in range(4, 32):
        sreg = (S0, S1, S2, S3)[k & 3]
        a(f"v_fmac_f32 v{sreg}, v{U2+k}, v{U2+k}")
    a(f"v_add_f32 v{S0}, v{S0}, v{S1}"); a(f"v_add_f32 v{S2}, v{S2}, v{S3}"); a(f"v_add_f32 v{S0}, v{S0}, v{S2}")
    lred(S0)
    a(f"v_mul_f32 v{S0}, {f2u(1.0/512):#x}, v{S0}")
    bf16r(S0); bf16r(MEAN)
    a(f"v_add_f32 v{S0}, {f2u(1e-5):#x}, v{S0}")
    bf16r(S0)
    a(f"v_sqrt_f32 v{S0}, v{S0}")
    bf16r(S0)
    RS = 30
    a(f"v_rcp_f32 v{RS}, v{S0}")
    for k in range(32): a(f"v_sub_f32 v{U+k}, v{U+k}, v{MEAN}")
    for k in range(16): a(f"v_cvt_pk_bf16_f32 v{XS+k}, v{U+2*k}, v{U+2*k+1}")
    for k in range(16): a(f"v_lshlrev_b32 v{U+2*k}, 16, v{XS+k}"); a(f"v_and_b32 v{U+2*k+1}, s81, v{XS+k}")
    for k in range(32): a(f"v_mul_f32 v{U+k}, v{U+k}, v{RS}")
    for k in range(16): a(f"v_cvt_pk_bf16_f32 v{XS+k}, v{U+2*k}, v{U+2*k+1}")
    for q in range(4): a(f"ds_write_b128 v34, v[{XS+4*q}:{XS+4*q+3}] offset:{XN_LDS + 16*q}")
    a("s_waitcnt lgkmcnt(0)")
    lds_add(F_XN)
    a("s_branch L_s1_xn")
    a("L_s1_wxn:")
    lds_spin(F_XN, 1, sleep=1)
    a("L_s1_xn:")
    for su in range(2): a(f"ds_read_b128 v[{XO+4*su}:{XO+4*su+3}], v35 offset:{XN_LDS + 64*su}")
    a("s_waitcnt lgkmcnt(0)")
    for su in range(2):
        bt = BT
        a(f"s_waitcnt vmcnt({(1 - su) * 8})")
        for p in range(4):
            r0 = WT + (su * 8 + 2 * p) * 2; r1 = r0 + 2
            for y in range(2):
                a(f"v_perm_b32 v{bt+4*(2*y)+p}, v{r1+y}, v{r0+y}, s76")
                a(f"v_perm_b32 v{bt+4*(2*y+1)+p}, v{r1+y}, v{r0+y}, s77")
        for j in range(4):
            d = ACC + 4 * j
            c = "0" if su == 0 else f"v[{d}:{d+3}]"
            a(f"v_mfma_f32_16x16x32_bf16 v[{d}:{d+3}], v[{XO+4*su}:{XO+4*su+3}], v[{bt+4*j}:{bt+4*j+3}], {c}")
    a("v_lshlrev_b32 v2, 4, v0")
    for j in range(4): a(f"v_mov_b32 v{8+j}, v{ACC+4*j}")
    a("s_cmp_eq_u32 s10, 0"); a("s_cbranch_scc1 L_s1_red")
    a("s_lshl_b32 s4, s10, 10"); a("v_add_u32 v2, s4, v2")
    a(f"ds_write_b128 v2, v[8:11] offset:{S1X - 1024}")
    a("s_waitcnt lgkmcnt(0)")
    lds_add(F_S1)
    a("s_branch L_s1_done")
    a("L_s1_red:")
    tag_wait()
    a("v_mov_b32 v26, s42"); a("v_mov_b32 v27, s43"); a("v_mov_b32 v30, s42"); a("v_mov_b32 v31, s43")
    a("s_lshl_b32 s12, s97, 12"); a("s_lshl_b32 s4, s83, 11"); a("s_add_u32 s12, s12, s4"); a(f"s_add_u32 s12, s12, {XP:#x}")
    lds_spin(F_S1, 3, sleep=0)
    for q in range(3): a(f"ds_read_b128 v[{12+4*q}:{15+4*q}], v2 offset:{S1X + 1024*q}")
    a("s_waitcnt lgkmcnt(0)")
    for j in range(4): a(f"v_add_f32 v{8+j}, v{8+j}, v{12+j}"); a(f"v_add_f32 v{16+j}, v{16+j}, v{20+j}")
    a("v_add_f32 v24, v8, v16"); a("v_add_f32 v25, v9, v17"); a("v_add_f32 v28, v10, v18"); a("v_add_f32 v29, v11, v19")
    a("buffer_store_dwordx4 v[24:27], v2, s[56:59], s12 offen sc1")
    a("buffer_store_dwordx4 v[28:31], v2, s[56:59], s12 offen offset:1024 sc1")
    a("s_branch L_s1_done")
    a("L_s1_skip:")
    a("L_s1_done:")
    stamp(1)
    tag_wait()
    a("s_cmp_eq_u32 s3, 9"); a("s_cbranch_scc1 L_h1")
    a("s_cmp_eq_u32 s3, 10"); a("s_cbranch_scc1 L_h2")
    a("s_cmp_eq_u32 s3, 11"); a("s_cbranch_scc1 L_end")

    a("v_lshlrev_b32 v3, 12, v7"); a("v_lshl_add_u32 v3, v1, 4, v3")
    a("s_lshl_b32 s12, s92, 15"); a("s_lshl_b32 s4, s93, 8"); a("s_add_u32 s12, s12, s4"); a(f"s_add_u32 s12, s12, {XP:#x}"); a("s_add_u32 s13, s12, 16384")
    a("v_lshlrev_b32 v2, 7, v7"); a("v_lshl_add_u32 v2, v1, 3, v2")
    G = [40 + 4 * t for t in range(8)]
    mpoll("qp", [f"buffer_load_dwordx4 v[{G[t]}:{G[t]+3}], v3, s[56:59], s{12+(t>>2)} offen offset:{(t&3)*1024} sc1" for t in range(8)], G,
          sleep=opts.get("q_sleep", 2), st_cnt=5)
    stamp(3)
    for c in range(2):
        for jp in range(2):
            for e in range(2): a(f"v_add_f32 v{G[4*c+jp]+e}, v{G[4*c+jp]+e}, v{G[4*c+2+jp]+e}")
    for c in range(2):
        for jp in range(2): a(f"v_cvt_pk_bf16_f32 v{8+2*c+jp}, v{G[4*c+jp]}, v{G[4*c+jp]+1}")
    for c in range(2): a(f"ds_write_b64 v2, v[{8+2*c}:{9+2*c}] offset:{Q_LDS + c*512}")
    a("s_waitcnt lgkmcnt(0)")
    lds_add(F_Q)
    stamp(4)
    stamp_out(2, 6)
    a("s_endpgm")

    a("L_h1:")
    lds_add(F_CNT)
    a("s_cmp_ge_u32 s95, 56"); a("s_cbranch_scc1 L_h1_none")
    srd(52, 32, 1792 * 1024)
    W2 = 136
    a("s_lshl_b32 s12, s95, 15"); a("s_lshl_b32 s4, s96, 8"); a("s_add_u32 s12, s12, s4"); a("s_add_u32 s13, s12, 4096")
    def w2_loads():
        a("v_lshlrev_b32 v4, 13, v7"); a("v_lshl_add_u32 v4, v1, 4, v4")
        for i in range(8): a(f"buffer_load_dwordx4 v[{W2+4*i}:{W2+4*i+3}], v4, s[52:55], s{12+(i>>2)} offen offset:{(i&3)*1024} nt")
    if not defer: w2_loads()
    a("v_lshrrev_b32 v4, 5, v0"); a("v_lshlrev_b32 v3, 10, v4"); a("v_bfe_u32 v2, v0, 3, 2"); a("v_lshl_add_u32 v3, v2, 8, v3")
    a("v_lshlrev_b32 v8, 6, v2"); a("v_lshl_add_u32 v8, v4, 2, v8")
    a("v_and_b32 v2, 7, v0"); a("v_lshl_add_u32 v3, v2, 4, v3"); a("v_lshl_add_u32 v8, v2, 3, v8")
    a("s_lshr_b32 s4, s95, 1"); a("s_lshl_b32 s84, s4, 12"); a("s_and_b32 s4, s95, 1"); a("s_lshl_b32 s4, s4, 7"); a("s_add_u32 s84, s84, s4"); a(f"s_add_u32 s84, s84, {XP + 64*4096:#x}")
    a(f"s_add_u32 s85, s84, {28*4096}")
    G4h = [40 + 4 * t for t in range(4)]
    mpoll("gp", [f"buffer_load_dwordx4 v[{G4h[t]}:{G4h[t]+3}], v3, s[56:59], s{84+(t>>1)} offen offset:{(t&1)*2048} sc1" for t in range(4)], G4h,
          sleep=opts.get("g_sleep", 8))
    stamp(3)
    for e in range(2): a(f"v_add_f32 v{40+e}, v{40+e}, v{44+e}"); a(f"v_add_f32 v{48+e}, v{48+e}, v{52+e}")
    a("v_cvt_pk_bf16_f32 v40, v40, v41"); a("v_cvt_pk_bf16_f32 v44, v48, v49")
    ga, up, tm = 48, 52, 56
    a(f"v_lshlrev_b32 v{ga}, 16, v40"); a(f"v_and_b32 v{ga+1}, s81, v40")
    a(f"v_lshlrev_b32 v{up}, 16, v44"); a(f"v_and_b32 v{up+1}, s81, v44")
    for e in range(2): a(f"v_mul_f32 v{tm+e}, s80, v{ga+e}")
    for e in range(2): a(f"v_exp_f32 v{tm+e}, v{tm+e}")
    for e in range(2): a(f"v_add_f32 v{tm+e}, 1.0, v{tm+e}")
    for e in range(2): a(f"v_rcp_f32 v{tm+e}, v{tm+e}")
    for e in range(2): a(f"v_mul_f32 v{tm+e}, v{ga+e}, v{tm+e}")
    a(f"v_cvt_pk_bf16_f32 v40, v{tm}, v{tm+1}")
    a(f"v_lshlrev_b32 v{tm}, 16, v40"); a(f"v_and_b32 v{tm+1}, s81, v40")
    for e in range(2): a(f"v_mul_f32 v{tm+e}, v{tm+e}, v{up+e}")
    a(f"v_cvt_pk_bf16_f32 v40, v{tm}, v{tm+1}")
    a(f"ds_write_b32 v8, v40 offset:{H_LDS}")
    a("v_lshrrev_b32 v2, 2, v1"); a("v_lshlrev_b32 v2, 6, v2"); a("v_lshl_add_u32 v2, v7, 4, v2")
    a("s_waitcnt lgkmcnt(0)")
    a(f"ds_read_b128 v[72:75], v2 offset:{H_LDS}")
    if defer:
        lds_spin(F_ISS, 8)
        w2_loads()
    B2 = 76
    for p in range(4):
        a(f"s_waitcnt vmcnt({6-2*p})")
        r0 = W2 + 8 * p; r1 = r0 + 4
        for x in range(4):
            a(f"v_perm_b32 v{B2+4*(2*x)+p}, v{r1+x}, v{r0+x}, s76")
            a(f"v_perm_b32 v{B2+4*(2*x+1)+p}, v{r1+x}, v{r0+x}, s77")
    a("s_waitcnt lgkmcnt(0)")
    for j in range(8):
        b = B2 + 4 * j
        a(f"v_mfma_f32_16x16x32_bf16 v[{b}:{b+3}], v[72:75], v[{b}:{b+3}], 0")
    for j in range(8): a(f"v_mov_b32 v{8+j}, v{B2+4*j}")
    a("s_branch L_h1_out")
    a("L_h1_none:")
    for j in range(8): a(f"v_mov_b32 v{8+j}, 0")
    a("L_h1_out:")
    a("v_lshlrev_b32 v2, 4, v0")
    a(f"ds_write_b128 v2, v[8:11] offset:{W2R}"); a(f"ds_write_b128 v2, v[12:15] offset:{W2R+1024}")
    a("s_waitcnt lgkmcnt(0)")
    lds_add(F_W2)
    stamp(4)
    stamp_out(3, 5)
    a("s_endpgm")

    a("L_h2:")
    lds_add(F_CNT)
    srd(44, 24, 0x400000)
    srd(52, 34, 4096)
    a("v_lshlrev_b32 v2, 13, v7"); a("v_lshl_add_u32 v2, v1, 4, v2")
    a("s_lshl_b32 s12, s95, 16"); a("s_lshl_b32 s4, s96, 8"); a("s_add_u32 s12, s12, s4")
    a("s_add_u32 s13, s12, 4096"); a("s_add_u32 s14, s12, 32768"); a("s_add_u32 s15, s12, 36864")
    a("s_bfe_u32 s4, s2, 0x20002"); a("s_lshl_b32 s86, s4, 10")
    a("s_and_b32 s4, s2, 3"); a("s_lshl_b32 s4, s4, 8"); a("s_add_u32 s86, s86, s4")
    a("s_lshl_b32 s4, s96, 6"); a("s_add_u32 s86, s86, s4")
    a("s_bfe_u32 s4, s2, 0x20004"); a("s_lshl_b32 s4, s4, 2"); a("s_add_u32 s86, s86, s4")
    a("v_and_b32 v40, 3, v0"); a("v_lshlrev_b32 v40, 4, v40")
    a("buffer_load_dword v41, v40, s[48:51], s86 offen")
    a("v_lshlrev_b32 v44, 10, v7"); a("v_lshl_add_u32 v44, v1, 4, v44")
    a("s_lshl_b32 s87, s2, 12"); a(f"s_add_u32 s87, s87, {OP:#x}")
    if opts.get("pretouch", 1):
        a("s_mov_b64 exec, 1")
        a("buffer_load_dword v42, v5, s[56:59], s87 offen")
        a("buffer_load_dword v43, v5, s[52:55], s86 offen")
        a("s_mov_b64 exec, -1")
    def wo_loads():
        for u in range(2):
            for i in range(8):
                r = (8 if u == 0 else 104) + 4 * i
                a(f"buffer_load_dwordx4 v[{r}:{r+3}], v2, s[44:47], s{12+2*u+(i>>2)} offen offset:{(i&3)*1024} nt")
    if not defer: wo_loads()
    a("v_lshrrev_b32 v47, 2, v1"); a("v_lshlrev_b32 v47, 7, v47"); a("v_lshl_add_u32 v47, v7, 4, v47")
    a("v_lshrrev_b32 v45, 2, v0"); a("v_lshl_add_u32 v45, v45, 12, v40")
    a("s_and_b32 s4, s2, 3"); a("s_lshl_b32 s88, s4, 18"); a("s_bfe_u32 s4, s2, 0x20002"); a("s_lshl_b32 s4, s4, 10"); a("s_add_u32 s88, s88, s4")
    a("s_bfe_u32 s4, s2, 0x20004"); a("s_lshl_b32 s4, s4, 8"); a("s_add_u32 s88, s88, s4"); a("s_lshl_b32 s4, s96, 6"); a("s_add_u32 s88, s88, s4"); a(f"s_add_u32 s88, s88, {OP:#x}")
    for t in range(1, 4): a(f"s_add_u32 s{88+t}, s88, {65536*t}")
    a("v_lshlrev_b32 v46, 4, v0")
    if defer:
        lds_spin(F_ISS, 8)
        wo_loads()
    B0, B1 = 72, 8
    for p in range(4):
        a(f"s_waitcnt vmcnt({14-2*p})")
        r0 = 8 + 8 * p; r1 = r0 + 4
        for x in range(4):
            a(f"v_perm_b32 v{B0+4*(2*x)+p}, v{r1+x}, v{r0+x}, s76")
            a(f"v_perm_b32 v{B0+4*(2*x+1)+p}, v{r1+x}, v{r0+x}, s77")
    for p in range(4):
        a(f"s_waitcnt vmcnt({6-2*p})")
        r0 = 104 + 8 * p; r1 = r0 + 4
        for x in range(4):
            a(f"v_perm_b32 v{B1+4*(2*x)+p}, v{r1+x}, v{r0+x}, s76")
            a(f"v_perm_b32 v{B1+4*(2*x+1)+p}, v{r1+x}, v{r0+x}, s77")
    lds_spin(F_W2, 1)
    a(f"ds_read_b128 v[48:51], v46 offset:{W2R}"); a(f"ds_read_b128 v[52:55], v46 offset:{W2R+1024}")
    for jp in range(4): a(f"v_mov_b32 v{106+4*jp}, s42"); a(f"v_mov_b32 v{107+4*jp}, s43")
    a("v_lshlrev_b32 v56, 16, v41"); a("v_and_b32 v57, s81, v41")
    stamp(2)
    lds_spin(F_O, 4, sleep=0)
    stamp(3)
    a(f"ds_read_b128 v[64:67], v47 offset:{O_LDS}"); a(f"ds_read_b128 v[68:71], v47 offset:{O_LDS+64}")
    a("s_waitcnt lgkmcnt(0)")
    for j in range(8):
        d = B0 + 4 * j
        a(f"v_mfma_f32_16x16x32_bf16 v[{d}:{d+3}], v[64:67], v[{d}:{d+3}], 0")
    for j in range(8):
        d = B0 + 4 * j; b = B1 + 4 * j
        a(f"v_mfma_f32_16x16x32_bf16 v[{d}:{d+3}], v[68:71], v[{b}:{b+3}], v[{d}:{d+3}]")
    for jp in range(4):
        a(f"v_add_f32 v{104+4*jp}, v{B0+8*jp}, v{48+2*jp}"); a(f"v_add_f32 v{105+4*jp}, v{B0+8*jp+4}, v{49+2*jp}")
        a(f"buffer_store_dwordx4 v[{104+4*jp}:{107+4*jp}], v44, s[56:59], s87 offen offset:{256*jp} sc1")
    stamp(4)
    GF = [120 + 4 * t for t in range(4)]
    mpoll("op", [f"buffer_load_dwordx4 v[{GF[t]}:{GF[t]+3}], v45, s[56:59], s{88+t} offen sc1" for t in range(4)], GF,
          sleep=opts.get("op_sleep", 0), st_cnt=7)
    stamp(5)
    for e in range(2):
        a(f"v_add_f32 v{GF[0]+e}, v{GF[0]+e}, v{GF[1]+e}"); a(f"v_add_f32 v{GF[2]+e}, v{GF[2]+e}, v{GF[3]+e}")
    for e in range(2): a(f"v_add_f32 v{GF[0]+e}, v{GF[0]+e}, v{GF[2]+e}")
    for ror in (4, 8):
        for e in range(2): a(f"v_add_f32_dpp v{GF[0]+e}, v{GF[0]+e}, v{GF[0]+e} row_ror:{ror} {DPPM}")
    for which in (16, 32): xswap("v_add_f32", [GF[0], GF[0] + 1], [GF[1], GF[1] + 1], which)
    a(f"v_add_f32 v56, v56, v{GF[0]}"); a(f"v_add_f32 v57, v57, v{GF[0]+1}")
    a("v_cvt_pk_bf16_f32 v46, v56, v57")
    a("s_mov_b64 exec, 0xf")
    a("buffer_store_dword v46, v40, s[52:55], s86 offen")
    a("s_cmp_lg_u32 s2, 0"); a("s_cbranch_scc1 L_h2_fin")
    a("s_mov_b64 exec, 1")
    a("v_mov_b32 v46, s42"); a("v_mov_b32 v47, s43")
    a("buffer_store_dwordx2 v[46:47], v5, s[56:59], 0 offen sc1")
    a("L_h2_fin:")
    if opts.get("dbgspan"):
        a("s_memrealtime s[72:73]")
        a("s_load_dwordx2 s[70:71], s[0:1], 80")
        a("s_waitcnt lgkmcnt(0)")
        a("s_mov_b64 exec, 1")
        a("s_not_b32 s74, s74")
        a("v_mov_b32 v46, s74"); a("v_mov_b32 v47, s72")
        a("global_atomic_umax v5, v46, s[70:71] sc1")
        a("global_atomic_umax v5, v47, s[70:71] offset:4 sc1")
    a("s_mov_b64 exec, -1")
    stamp(6)
    stamp_out(4, 8)
    a("L_end:")
    a("s_endpgm")
    a("L_code_end:")
    a('.section .rodata,"a"'); a(".p2align 6"); a(f".amdhsa_kernel {NAME}_kernel")
    for l in (".amdhsa_next_free_vgpr 168", ".amdhsa_next_free_sgpr 102", ".amdhsa_accum_offset 168", ".amdhsa_group_segment_fixed_size 0",
              ".amdhsa_kernarg_size 96", ".amdhsa_user_sgpr_count 2", ".amdhsa_user_sgpr_kernarg_segment_ptr 1", ".amdhsa_system_sgpr_workgroup_id_x 1"):
        a("  " + l)
    a(".end_amdhsa_kernel")
    open(out, "w").write(a.finalize())
    if opts.get("cpf", 1) and "_pcoff" not in opts:
        import subprocess
        subprocess.run(["clang", "-x", "assembler", "-target", "amdgcn-amd-amdhsa", "-mcpu=gfx950", "-c", out, "-o", "_g.o"], check=True)
        nm = subprocess.run(["llvm-objdump", "-t", "_g.o"], capture_output=True, text=True).stdout
        sym = {l.split()[-1]: int(l.split()[0], 16) for l in nm.splitlines() if ".text" in l and l[:8] == "00000000"}
        o2 = dict(opts); o2["_pcoff"] = sym["L_pcbase"] & 0xffffff00; o2["_csize"] = sym["L_code_end"]
        assert o2["_pcoff"] > 64 and o2["_csize"] > 64
        gen(out, stamps, o2)

if __name__ == "__main__":
    gen("k_v8d.s", opts=dict(dbgspan=1))
```

```python
import sys, struct
from asmlib import Asm
NAME = "parallel_sum__gqa_block_cached__glu_gated_swiglu__decode"

def f2u(x): return struct.unpack("<I", struct.pack("<f", x))[0]

QP = 0x10000
XP = 0x100000
AP = 0x200000
OP = 0x300000
STAMP = 0x8000000
F_Q, F_CNT, F_ISS, F_W2, F_O, F_S1, F_XN, F_ML, F_GO, F_P1, F_P2, F_PB = 0, 4, 8, 12, 16, 20, 24, 28, 32, 36, 40, 44
Q_LDS = 256
ML_LDS = 1280
H_LDS = 1536
O_LDS = 1792
W2R = 2304
OPART = 4352
PS = 272
WSTR = 8 * PS
S1X = OPART + 8 * WSTR
XN_LDS = S1X + 3072
LDS_BYTES = XN_LDS + 4096
BOUND = 2000000

DESIGN = """
Single persistent launch, one 12-wave workgroup per CU (generated by a hand-written python emitter).
 waves 0-7 : flash-decoding split (b, kv-head, 512 keys): K/V streamed straight into VGPRs (nt, windowed),
             QK^T / PV on 16x16x32 bf16 MFMA, true max per wave, log-sum-exp merge across waves and splits.
 waves 8-11: LayerNorm + one [256x64] tile of wq/w1/w3 (MFMA GEMV), q / SwiGLU gathers, wo/w2 tile, final reduce.
 Cross-workgroup hand-offs go through d_ws as self-validating 16-byte granules {payload, tag} written and read
 with agent-scope (sc1) vector accesses; tag = (64-bit word found at d_ws[0]) + 1, stored back at the end, so a
 launch tells its own hand-offs from older contents.  All spins are bounded.  s_sleep is only polling back-off.
"""

def gen(out, stamps=False, opts=None):
    opts = opts or {}
    global XP, AP, OP
    wo_ = opts.get("wsoff", 0)
    XP, AP, OP = 0x100000 + wo_, 0x200000 + wo_, 0x300000 + wo_
    defer = opts.get("defer", True)
    a = Asm()
    hdr = open("cdna_kernels/%s.s.ref" % NAME).read().split("; Override launch")[0]
    a.lines += hdr.strip("\n").split("\n")
    a(f"; @launch grid=(256,1,1) block=(768,1,1) lds={LDS_BYTES}")
    for l in DESIGN.strip("\n").split("\n"): a.lines.append("; " + l)
    a('.amdgcn_target "amdgcn-amd-amdhsa--gfx950"')
    a(".text"); a(f".globl {NAME}_kernel"); a(".p2align 8"); a(f".type {NAME}_kernel,@function"); a(f"{NAME}_kernel:")
    lite = opts.get("lite", 0)
    def stamp(k, force=False):
        if stamps or (lite and (k == 0 or force)): a(f"s_memrealtime s[{60+2*k}:{61+2*k}]")
    def stamp_out(role, n):
        if not (stamps or (lite and role == 5)): return
        a("s_waitcnt lgkmcnt(0)")
        a("s_mov_b64 exec, 1")
        a(f"s_mul_i32 s4, s2, {16*8*8}")
        a(f"s_add_u32 s4, s4, {STAMP + role*64}")
        a("v_mov_b32 v1, s4")
        for k in range(n):
            a(f"v_mov_b32 v2, s{60+2*k}"); a(f"v_mov_b32 v3, s{61+2*k}")
            a(f"buffer_store_dwordx2 v[2:3], v1, s[56:59], 0 offen offset:{8*k}")
        a("s_mov_b64 exec, -1")
    def srd(d, lo, size):
        a(f"s_mov_b32 s{d}, s{lo}"); a(f"s_mov_b32 s{d+1}, s{lo+1}"); a(f"s_mov_b32 s{d+2}, {size:#x}"); a(f"s_mov_b32 s{d+3}, 0x20000")
    uid = [0]
    def lds_spin(off, val, sleep=2):
        uid[0] += 1; L = f"L_spin{uid[0]}"
        a("s_mov_b32 s5, 0")
        a(f"{L}:")
        a(f"ds_read_b32 v4, v5 offset:{off}")
        a("s_waitcnt lgkmcnt(0)")
        a("v_readfirstlane_b32 s4, v4")
        a(f"s_cmp_ge_u32 s4, {val}")
        a(f"s_cbranch_scc1 {L}_done")
        if sleep: a(f"s_sleep {sleep}")
        a("s_add_u32 s5, s5, 1")
        a(f"s_cmp_lt_u32 s5, {BOUND*4}")
        a(f"s_cbranch_scc1 {L}")
        a(f"{L}_done:")
    def lds_add(off):
        a("s_mov_b64 exec, 1")
        a(f"ds_add_u32 v5, v6 offset:{off}")
        a("s_mov_b64 exec, -1")
    def xswap(op, regs, tmps, which):
        for r, t in zip(regs, tmps): a(f"v_mov_b32 v{t}, v{r}")
        for r, t in zip(regs, tmps): a(f"v_permlane{which}_swap_b32 v{r}, v{t}")
        for r, t in zip(regs, tmps): a(f"{op} v{r}, v{r}, v{t}")
    def xreduce(op, r, t):
        xswap(op, [r], [t], 16); xswap(op, [r], [t], 32)
    DPPM = "row_mask:0xf bank_mask:0xf"
    def bf16r(r):
        a(f"v_cvt_pk_bf16_f32 v{r}, v{r}, v{r}"); a(f"v_lshlrev_b32 v{r}, 16, v{r}")
    def tag_wait():
        a("s_waitcnt lgkmcnt(0)")
        a("s_add_u32 s42, s40, 1"); a("s_addc_u32 s43, s41, 0"); a("s_and_b32 s75, s43, 0xff")
    MASKS = [16 + 2 * t for t in range(12)] + [84 + 2 * t for t in range(4)]
    def mpoll(name, loads, regs, sleep=0, st_cnt=None, t40=None):
        n = len(loads)
        a("s_mov_b32 s9, 0")
        for t in range(n): a(loads[t])
        a(f"L_{name}:")
        a("s_waitcnt vmcnt(0)")
        for t in range(n):
            m = MASKS[t]
            if t40 is None:
                a(f"v_cmp_ne_u64 s[{m}:{m+1}], v[{regs[t]+2}:{regs[t]+3}], s[42:43]")
            else:
                a(f"v_and_b32 v{t40+t}, 0xff, v{regs[t]+2}")
                a(f"v_cmp_ne_u32 s[{m}:{m+1}], s42, v{regs[t]+3}")
                a(f"v_cmp_ne_u32 vcc, s75, v{t40+t}")
                a(f"s_or_b64 s[{m}:{m+1}], s[{m}:{m+1}], vcc")
        if n == 1: a(f"s_mov_b64 s[6:7], s[{MASKS[0]}:{MASKS[0]+1}]")
        else: a(f"s_or_b64 s[6:7], s[{MASKS[0]}:{MASKS[0]+1}], s[{MASKS[1]}:{MASKS[1]+1}]")
        for t in range(2, n): a(f"s_or_b64 s[6:7], s[6:7], s[{MASKS[t]}:{MASKS[t]+1}]")
        a("s_cmp_eq_u64 s[6:7], 0"); a(f"s_cbranch_scc1 L_{name}_done")
        a("s_add_u32 s9, s9, 1"); a(f"s_cmp_ge_u32 s9, {BOUND}"); a(f"s_cbranch_scc1 L_{name}_done")
        if sleep: a(f"s_sleep {sleep}")
        for t in range(n):
            m = MASKS[t]
            a(f"s_mov_b64 exec, s[{m}:{m+1}]")
            a(f"s_cbranch_execz L_{name}_sk{t}")
            a(loads[t])
            a(f"L_{name}_sk{t}:")
        a("s_mov_b64 exec, -1")
        a(f"s_branch L_{name}")
        a(f"L_{name}_done:")
        if stamps and st_cnt is not None:
            a("s_waitcnt lgkmcnt(0)")
            a(f"s_mul_i32 s4, s9, 100"); a(f"s_add_u32 s{60+2*st_cnt}, s60, s4"); a(f"s_addc_u32 s{61+2*st_cnt}, s61, 0")

    def ppoll(name, loads, regs, sleep=1, many=64):
        n = len(loads)
        a("s_mov_b32 s9, 0")
        a("s_not_b32 s4, s42")
        for t in range(n): a(f"v_mov_b32 v{regs[t]+2}, s4")
        a("s_mov_b32 exec_lo, 0x80000000"); a("s_mov_b32 exec_hi, 0x80000000")
        for t in range(n): a(loads[t])
        a("s_mov_b64 exec, -1")
        a(f"L_{name}:")
        a("s_waitcnt vmcnt(0)")
        for t in range(n):
            m = MASKS[t]
            a(f"v_cmp_ne_u64 s[{m}:{m+1}], v[{regs[t]+2}:{regs[t]+3}], s[42:43]")
        a(f"s_bcnt1_i32_b64 s5, s[{MASKS[0]}:{MASKS[0]+1}]")
        for t in range(1, n):
            a(f"s_bcnt1_i32_b64 s4, s[{MASKS[t]}:{MASKS[t]+1}]"); a("s_add_u32 s5, s5, s4")
        a("s_cmp_eq_u32 s5, 0"); a(f"s_cbranch_scc1 L_{name}_done")
        a("s_add_u32 s9, s9, 1"); a(f"s_cmp_ge_u32 s9, {BOUND}"); a(f"s_cbranch_scc1 L_{name}_done")
        a(f"s_cmp_le_u32 s5, {many}"); a(f"s_cbranch_scc1 L_{name}_full")
        if sleep: a(f"s_sleep {sleep}")
        for t in range(n):
            m = MASKS[t]
            for h in range(2):
                a(f"s_and_b32 s4, s{m+h}, 0x80000000"); a(f"s_cselect_b32 s{m+h}, s4, s{m+h}")
        a(f"L_{name}_full:")
        for t in range(n):
            m = MASKS[t]
            a(f"s_mov_b64 exec, s[{m}:{m+1}]")
            a(f"s_cbranch_execz L_{name}_sk{t}")
            a(loads[t])
            a(f"L_{name}_sk{t}:")
        a("s_mov_b64 exec, -1")
        a(f"s_branch L_{name}")
        a(f"L_{name}_done:")

    def pack4(r, d, t):
        for x in r: a(f"v_add_u32 v{x}, 0x200, v{x}")
        a(f"v_lshrrev_b32 v{t}, 22, v{r[3]}"); a(f"v_bfe_u32 v{t+1}, v{r[3]}, 12, 10"); a(f"v_bfe_u32 v{t+2}, v{r[3]}, 10, 2")
        a(f"v_and_or_b32 v{d}, v{r[0]}, s73, v{t}"); a(f"v_and_or_b32 v{d+1}, v{r[1]}, s73, v{t+1}")
        a(f"v_lshl_or_b32 v{t+2}, v{t+2}, 8, s75"); a(f"v_and_or_b32 v{d+2}, v{r[2]}, s73, v{t+2}")
    def unpack4(d, o, t):
        a(f"v_lshlrev_b32 v{o+3}, 22, v{d}"); a(f"v_and_b32 v{t}, 0x3ff, v{d+1}"); a(f"v_bfe_u32 v{t+1}, v{d+2}, 8, 2")
        a(f"v_and_b32 v{o}, s73, v{d}"); a(f"v_and_b32 v{o+1}, s73, v{d+1}"); a(f"v_and_b32 v{o+2}, s73, v{d+2}")
        a(f"v_lshl_or_b32 v{o+3}, v{t}, 12, v{o+3}"); a(f"v_lshl_or_b32 v{o+3}, v{t+1}, 10, v{o+3}")
    a("s_cmp_ge_u32 s2, 256"); a("s_cbranch_scc1 L_end")
    stamp(0)
    if opts.get("dbgspan"): a("s_memrealtime s[74:75]")
    a("s_load_dwordx16 s[16:31], s[0:1], 0")
    a("s_load_dwordx8 s[32:39], s[0:1], 64")
    a("v_lshrrev_b32 v1, 6, v0")
    a("v_and_b32 v0, 63, v0")
    a("v_readfirstlane_b32 s3, v1")
    a("v_mov_b32 v5, 0"); a("v_mov_b32 v6, 1")
    a("s_mov_b32 s76, 0x05040100"); a("s_mov_b32 s77, 0x07060302")
    a(f"s_mov_b32 s78, {f2u(1.4426950408889634):#x}")
    a(f"s_mov_b32 s79, {f2u(128 ** -0.5):#x}")
    a(f"s_mov_b32 s80, {f2u(-1.4426950408889634):#x}")
    a("s_mov_b32 s81, 0xffff0000")
    a("v_lshlrev_b32 v2, 2, v0"); a("s_mov_b64 exec, 0xffff"); a("ds_write_b32 v2, v5"); a("s_mov_b64 exec, -1")
    a("v_and_b32 v1, 15, v0")
    a("v_lshrrev_b32 v7, 4, v0")
    a("s_bfe_u32 s92, s2, 0x30003"); a("s_lshr_b32 s93, s2, 6"); a("s_and_b32 s94, s2, 7"); a("s_and_b32 s95, s2, 63"); a("s_lshr_b32 s96, s2, 6")
    a("s_waitcnt lgkmcnt(0)")
    a("s_load_dwordx2 s[40:41], s[38:39], 0")
    srd(56, 38, 0x10000000)
    a("s_cmp_ge_u32 s3, 8"); a("s_cbranch_scc1 L_helper")

    KR, VR, QB, PR = 8, 72, 136, 140
    srd(44, 18, 0x2000000); srd(48, 20, 0x2000000)
    pat = opts.get("pat", 3)
    SS, AS, IS = {0: (131072, 16384, 1024), 1: (16384, 131072, 1024), 2: (1024, 131072, 8192), 3: (131072, 1024, 8192),
                  4: (1024, 8192, 65536), 5: (8192, 1024, 65536)}[pat]
    a("s_lshr_b32 s52, s2, 3"); a("s_lshl_b32 s52, s52, 20"); a(f"s_mul_i32 s4, s94, {SS}"); a("s_add_u32 s52, s52, s4")
    a(f"s_mul_i32 s4, s3, {AS}"); a("s_add_u32 s52, s52, s4")
    a("v_lshrrev_b32 v2, 2, v1"); a("v_lshlrev_b32 v2, 8, v2"); a("v_lshl_add_u32 v2, v7, 6, v2")
    a("v_and_b32 v3, 3, v1"); a("v_lshl_add_u32 v2, v3, 4, v2")
    a("v_lshlrev_b32 v3, 4, v0")
    thr = [opts.get("thr", 3)]
    thr2 = opts.get("thr2", 8)
    QW = opts.get("qw", 8)
    nld = [0]
    def ld(kind, i):
        if kind == "V" and i >= QW: thr[0] = thr2
        if nld[0] >= thr[0]: a(f"s_waitcnt vmcnt({thr[0]-1})")
        nld[0] += 1
        a(f"s_add_u32 s53, s52, {i*IS}")
        if kind == "K": a(f"buffer_load_dwordx4 v[{KR+4*i}:{KR+4*i+3}], v2, s[44:47], s53 offen nt")
        else: a(f"buffer_load_dwordx4 v[{VR+4*i}:{VR+4*i+3}], v3, s[48:51], s53 offen nt")
        n_ = i + (16 if kind == "V" else 0) + 1
        if n_ == opts.get("p1", 13): lds_add(F_P1)
        if n_ == opts.get("p2", 22): lds_add(F_P2)
    for i in range(16):
        if i == thr[0]:
            a("s_barrier")
            if opts.get("prof"): stamp(5)
        ld("K", i)
        if opts.get("prof") and i == 7: stamp(6)
    if opts.get("prof"): stamp(7)
    for i in range(QW): ld("V", i)
    stamp(1)
    tag_wait()
    lds_spin(F_Q, 1)
    stamp(2)
    a(f"ds_read_b128 v[{QB}:{QB+3}], v2 offset:{Q_LDS}")
    vnext = [QW]
    def nextv():
        if vnext[0] < 16:
            ld("V", vnext[0]); vnext[0] += 1
            if vnext[0] == opts.get("isspt", 16): lds_add(F_ISS)
    nextv()
    if QW + 1 < thr2: a(f"s_waitcnt vmcnt({QW+1})")
    a("s_waitcnt lgkmcnt(0)")
    for i in range(16):
        k = KR + 4 * i
        a(f"v_mfma_f32_16x16x32_bf16 v[{k}:{k+3}], v[{k}:{k+3}], v[{QB}:{QB+3}], 0")
    nextv()
    for grp in range(4):
        for c in range(4):
            for i in range(grp * 4, grp * 4 + 4):
                k = KR + 4 * i
                if c == 0: a(f"v_mov_b32_dpp v{k}, v{k} quad_perm:[0,0,0,0] {DPPM}")
                else: a(f"v_add_f32_dpp v{k}, v{k+c}, v{k} quad_perm:[{c},{c},{c},{c}] {DPPM}")
    nextv()
    T = [KR + 4 * i for i in range(16)]
    for step in range(5):
        for i in range(0, 16, 2):
            t0, t1, pk = T[i], T[i + 1], T[i] + 1
            if step == 0: a(f"v_cvt_pk_bf16_f32 v{pk}, v{t0}, v{t1}")
            if step == 1: a(f"v_lshlrev_b32 v{t0}, 16, v{pk}"); a(f"v_and_b32 v{t1}, s81, v{pk}")
            if step == 2: a(f"v_mul_f32 v{t0}, s79, v{t0}"); a(f"v_mul_f32 v{t1}, s79, v{t1}")
            if step == 3: a(f"v_cvt_pk_bf16_f32 v{pk}, v{t0}, v{t1}")
            if step == 4: a(f"v_lshlrev_b32 v{t0}, 16, v{pk}"); a(f"v_and_b32 v{t1}, s81, v{pk}")
    nextv()
    M, Lr, TMP, NM = 148, 149, 150, 151
    a(f"v_max3_f32 v{M}, v{T[0]}, v{T[1]}, v{T[2]}")
    a(f"v_max3_f32 v{TMP}, v{T[3]}, v{T[4]}, v{T[5]}")
    a(f"v_max3_f32 v{M}, v{M}, v{T[6]}, v{T[7]}")
    a(f"v_max3_f32 v{TMP}, v{TMP}, v{T[8]}, v{T[9]}")
    a(f"v_max3_f32 v{M}, v{M}, v{T[10]}, v{T[11]}")
    a(f"v_max3_f32 v{TMP}, v{TMP}, v{T[12]}, v{T[13]}")
    a(f"v_max3_f32 v{M}, v{M}, v{T[14]}, v{T[15]}")
    a(f"v_max_f32 v{M}, v{M}, v{TMP}")
    xreduce("v_max_f32", M, TMP)
    a(f"v_mul_f32 v{NM}, s80, v{M}")
    for i in range(16): a(f"v_fma_f32 v{T[i]}, v{T[i]}, s78, v{NM}")
    for i in range(16): a(f"v_exp_f32 v{T[i]}, v{T[i]}")
    nextv()
    for k in range(8): a(f"v_cvt_pk_bf16_f32 v{PR+k}, v{T[2*k]}, v{T[2*k+1]}")
    a(f"v_add_f32 v{Lr}, v{T[0]}, v{T[1]}"); a(f"v_add_f32 v{TMP}, v{T[2]}, v{T[3]}")
    for i in range(4, 16, 2):
        a(f"v_add_f32 v{Lr}, v{Lr}, v{T[i]}"); a(f"v_add_f32 v{TMP}, v{TMP}, v{T[i+1]}")
    a(f"v_add_f32 v{Lr}, v{Lr}, v{TMP}")
    xreduce("v_add_f32", Lr, TMP)
    a(f"s_mul_i32 s4, s3, {WSTR}")
    a(f"v_lshl_add_u32 v152, v0, 2, s4")
    a("v_lshrrev_b32 v153, 2, v0"); a("v_lshlrev_b32 v153, 6, v153"); a("s_lshl_b32 s4, s3, 3"); a("v_add_u32 v153, s4, v153")
    a("s_mov_b64 exec, 0x1111")
    a(f"ds_write_b64 v153, v[{M}:{M+1}] offset:{ML_LDS}")
    a("s_waitcnt lgkmcnt(0)")
    a("s_mov_b64 exec, 1")
    a(f"ds_add_u32 v5, v6 offset:{F_ML}")
    a("s_mov_b64 exec, -1")
    stamp(3)
    nextv()
    DO = 40
    BOs = (8, VR)
    def vwait(i):
        outstanding_after = vnext[0] - 1 - i
        if outstanding_after < thr[0]: a(f"s_waitcnt vmcnt({outstanding_after})")
    def perms(u, p):
        BO = BOs[u]
        i = 8 * u + 2 * p
        vwait(i + 1)
        r0, r1 = VR + 4 * i, VR + 4 * (i + 1)
        for x in range(4):
            a(f"v_perm_b32 v{BO+4*(2*x)+p}, v{r1+x}, v{r0+x}, s76")
            a(f"v_perm_b32 v{BO+4*(2*x+1)+p}, v{r1+x}, v{r0+x}, s77")
    def mfmas(u):
        for j in range(8):
            d = DO + 4 * j; b = BOs[u] + 4 * j
            c = "0" if u == 0 else f"v[{d}:{d+3}]"
            a(f"v_mfma_f32_16x16x32_bf16 v[{d}:{d+3}], v[{PR+4*u}:{PR+4*u+3}], v[{b}:{b+3}], {c}")
    nextv(); nextv()
    while vnext[0] < 16: nextv()
    for p in range(4): perms(0, p)
    mfmas(0)
    a("v_and_b32 v154, 31, v0")
    a("v_lshrrev_b32 v155, 5, v0")
    a("s_cmp_ge_u32 s3, 4"); a("s_cbranch_scc1 L_pre_hi")
    a(f"v_and_b32 v156, 3, v154"); a(f"v_mul_u32_u24 v156, {2*PS}, v156")
    a("v_lshrrev_b32 v157, 2, v154"); a("v_lshl_add_u32 v157, v155, 3, v157"); a("s_lshl_b32 s4, s3, 4"); a("v_add_u32 v157, s4, v157")
    a("v_lshl_add_u32 v156, v157, 2, v156")
    a("s_lshl_b32 s4, s3, 6"); a("v_mov_b32 v157, s4")
    a("v_lshlrev_b32 v158, 13, v155"); a("v_lshl_add_u32 v158, v154, 3, v158")
    a("s_lshl_b32 s4, s92, 2"); a("s_add_u32 s4, s4, s3"); a("s_lshl_b32 s8, s4, 14")
    a("s_lshl_b32 s4, s93, 11"); a("s_add_u32 s8, s8, s4")
    a("s_lshl_b32 s4, s94, 8"); a("s_add_u32 s8, s8, s4"); a(f"s_add_u32 s8, s8, {AP:#x}")
    a("v_mov_b32 v163, s42")
    a("s_branch L_pre_done")
    a("L_pre_hi:")
    a("v_lshlrev_b32 v158, 4, v0")
    a("s_lshl_b32 s8, s95, 13"); a("s_sub_u32 s4, s3, 4"); a("s_lshl_b32 s10, s4, 11"); a("s_add_u32 s8, s8, s10"); a(f"s_add_u32 s8, s8, {AP:#x}")
    a("s_lshl_b32 s4, s4, 7"); a("v_lshl_add_u32 v156, v1, 3, s4")
    a("L_pre_done:")
    for p in range(4): perms(1, p)
    mfmas(1)
    stamp(4)
    for j in range(8):
        a(f"ds_write_b32 v152, v{DO+4*j} offset:{OPART + j*PS}")
    a("s_waitcnt lgkmcnt(0)")
    lds_add(F_CNT)
    a("s_cmp_ge_u32 s3, 4"); a("s_cbranch_scc1 L_poller")
    lds_spin(F_ML, 8, sleep=0)
    for q in range(4): a(f"ds_read_b128 v[{16+4*q}:{19+4*q}], v157 offset:{ML_LDS + 16*q}")
    a("s_waitcnt lgkmcnt(0)")
    ms = [16 + 2 * w for w in range(8)]
    a(f"v_max3_f32 v48, v{ms[0]}, v{ms[1]}, v{ms[2]}"); a(f"v_max3_f32 v49, v{ms[3]}, v{ms[4]}, v{ms[5]}")
    a(f"v_max3_f32 v48, v48, v{ms[6]}, v{ms[7]}"); a("v_max_f32 v48, v48, v49")
    a("v_mul_f32 v49, s80, v48")
    for w in range(8): a(f"v_fma_f32 v{ms[w]}, v{ms[w]}, s78, v49")
    for w in range(8): a(f"v_exp_f32 v{ms[w]}, v{ms[w]}")
    a(f"v_mul_f32 v50, v{ms[0]}, v{ms[0]+1}")
    for w in range(1, 8): a(f"v_fmac_f32 v50, v{ms[w]}, v{ms[w]+1}")
    a("v_rcp_f32 v53, v50"); a("v_log_f32 v54, v50")
    for w in range(8): a(f"v_mul_f32 v{ms[w]}, v{ms[w]}, v53")
    a("v_sub_f32 v162, v54, v49")
    a("v_add_u32 v162, 0x80, v162"); a("v_and_b32 v162, 0xffffff00, v162"); a("v_or_b32 v162, s75, v162")
    lds_spin(F_CNT, 11, sleep=0)
    if not opts.get("prof"): stamp(5)
    for w in range(8):
        a(f"ds_read_b32 v{32+2*w}, v156 offset:{OPART + w*WSTR}")
        a(f"ds_read_b32 v{33+2*w}, v156 offset:{OPART + w*WSTR + PS}")
    if stamps: a("s_waitcnt lgkmcnt(0)")
    for w in range(8):
        if w % 2 == 0: a(f"s_waitcnt lgkmcnt({12 - 2*w if 12 - 2*w > 0 else 0})")
        if w < 2:
            a(f"v_mul_f32 v{51+2*w}, v{ms[w]}, v{32+2*w}"); a(f"v_mul_f32 v{52+2*w}, v{ms[w]}, v{33+2*w}")
        else:
            a(f"v_fmac_f32 v{51+2*(w&1)}, v{ms[w]}, v{32+2*w}"); a(f"v_fmac_f32 v{52+2*(w&1)}, v{ms[w]}, v{33+2*w}")
    a("v_add_f32 v51, v51, v53"); a("v_add_f32 v52, v52, v54")
    a("v_cvt_pk_bf16_f32 v160, v51, v52")
    a(f"v_mov_b32_dpp v161, v160 quad_perm:[1,1,3,3] {DPPM}")
    a("s_mov_b32 exec_lo, 0x55555555"); a("s_mov_b32 exec_hi, 0x55555555")
    a("buffer_store_dwordx4 v[160:163], v158, s[56:59], s8 offen sc1")
    a("s_mov_b64 exec, -1")
    if not opts.get("prof"): stamp(6)
    if stamps:
        a("s_cmp_eq_u32 s3, 0"); a("s_cbranch_scc0 L_end")
        stamp_out(0, 8)
    a("s_endpgm")
    a("L_poller:")
    G2 = [8, 12]
    aploads = [f"buffer_load_dwordx4 v[{G2[t]}:{G2[t]+3}], v158, s[56:59], s8 offen offset:{t*1024} sc1" for t in range(2)]
    mpoll("ap", aploads, G2, sleep=opts.get("ap_sleep", 1), t40=16)
    stamp(5)
    for t in range(2): a(f"v_and_b32 v{G2[t]+2}, 0xffffff00, v{G2[t]+2}")
    a("v_max_f32 v24, v10, v14")
    U8 = [32 + k for k in range(8)]
    for t in range(2):
        for e in range(2):
            a(f"v_lshlrev_b32 v{U8[4*t+2*e]}, 16, v{G2[t]+e}"); a(f"v_and_b32 v{U8[4*t+2*e+1]}, s81, v{G2[t]+e}")
    xreduce("v_max_f32", 24, 25)
    for t in range(2): a(f"v_sub_f32 v{G2[t]+2}, v{G2[t]+2}, v24")
    for t in range(2): a(f"v_exp_f32 v{G2[t]+2}, v{G2[t]+2}")
    a("v_add_f32 v26, v10, v14")
    for k in range(4): a(f"v_mul_f32 v{27+k}, v10, v{U8[k]}")
    for k in range(4): a(f"v_fmac_f32 v{27+k}, v14, v{U8[4+k]}")
    for which in (16, 32): xswap("v_add_f32", [26, 27, 28, 29, 30], [40, 41, 42, 43, 44], which)
    a("v_rcp_f32 v26, v26")
    for k in range(4): a(f"v_mul_f32 v{27+k}, v{27+k}, v26")
    a("v_cvt_pk_bf16_f32 v32, v27, v28"); a("v_cvt_pk_bf16_f32 v33, v29, v30")
    a(f"ds_write_b64 v156, v[32:33] offset:{O_LDS}")
    a("s_waitcnt lgkmcnt(0)")
    lds_add(F_O)
    if not opts.get("prof"): stamp(6)
    if stamps:
        a("s_cmp_eq_u32 s3, 7"); a("s_cbranch_scc0 L_end")
        stamp_out(1, 8)
    a("s_endpgm")

    a("L_helper:")
    a("s_barrier")
    a("s_setprio 3")
    a("s_mov_b32 s73, 0xfffffc00")
    if opts.get("cpf", 1):
        a("s_cmp_lg_u32 s3, 11"); a("s_cbranch_scc1 L_nocpf")
        a("s_getpc_b64 s[100:101]")
        a("L_pcbase:")
        a("s_and_b32 s100, s100, 0xffffff00")
        a(f"s_sub_u32 s100, s100, {opts.get('_pcoff', 0x1000):#x}"); a("s_subb_u32 s101, s101, 0")
        a("s_lshr_b32 s4, s2, 3"); a("s_and_b32 s4, s4, 7"); a("s_lshl_b32 s4, s4, 12")
        a("v_lshl_add_u32 v2, v0, 6, s4")
        a(f"v_cmp_gt_u32 vcc, {opts.get('_csize', 0x1000):#x}, v2")
        a("s_and_saveexec_b64 s[6:7], vcc")
        a("s_cbranch_execz L_cpf_x")
        a("global_load_dword v160, v2, s[100:101]")
        a("L_cpf_x:")
        a("s_mov_b64 exec, -1")
        a("L_nocpf:")
    srd(48, 16, 4096)
    a("s_sub_u32 s10, s3, 8")
    XS, XO, WT, BT, ACC = 8, 24, 40, 104, 120
    a("s_cmp_ge_u32 s2, 240"); a("s_cbranch_scc1 L_s1_skip")
    a("s_lshr_b32 s97, s2, 4"); a("s_lshl_b32 s97, s97, 3"); a("s_add_u32 s97, s97, s94"); a("s_bfe_u32 s83, s2, 0x10003")
    a("s_mov_b32 s44, s22"); a("s_mov_b32 s45, s23"); a("s_mov_b32 s46, 0x400000"); a("s_mov_b32 s98, 8192"); a("s_lshl_b32 s11, s97, 7")
    a("s_cmp_lt_u32 s2, 128"); a("s_cbranch_scc1 L_s1_sel")
    a("s_mov_b32 s44, s28"); a("s_mov_b32 s45, s29"); a(f"s_mov_b32 s46, {512*3584:#x}"); a("s_mov_b32 s98, 3584"); a("s_sub_u32 s4, s97, 64"); a("s_lshl_b32 s11, s4, 7")
    a("s_cmp_lt_u32 s97, 92"); a("s_cbranch_scc1 L_s1_sel")
    a("s_mov_b32 s44, s30"); a("s_mov_b32 s45, s31"); a("s_sub_u32 s4, s97, 92"); a("s_lshl_b32 s11, s4, 7")
    a("L_s1_sel:")
    a("s_mov_b32 s47, 0x20000")
    a("v_lshrrev_b32 v2, 2, v1"); a("v_lshlrev_b32 v2, 10, v2")
    a("s_lshl_b32 s82, s83, 2"); a("s_add_u32 s82, s82, s10")
    a("s_cmp_lg_u32 s10, 0"); a("s_cbranch_scc1 L_s1_nox")
    a("v_and_b32 v34, 3, v0"); a("v_lshl_add_u32 v34, v7, 2, v34"); a("v_lshl_add_u32 v34, v34, 6, v2")
    for q in range(4): a(f"buffer_load_dwordx4 v[{XS+4*q}:{XS+4*q+3}], v34, s[48:51], 0 offen offset:{16*q}")
    a("L_s1_nox:")
    a("s_lshl_b32 s4, s98, 3"); a("v_mul_lo_u32 v3, v7, s4"); a("v_lshl_add_u32 v3, v1, 3, v3")
    a("s_lshl_b32 s4, s98, 6"); a("s_mul_i32 s8, s82, s4"); a("s_add_u32 s8, s8, s11")
    a("s_mul_i32 s99, s98, 25")
    for su in range(2):
        for i in range(8):
            r = WT + (su * 8 + i) * 2
            a(f"buffer_load_dwordx2 v[{r}:{r+1}], v3, s[44:47], s8 offen nt")
            if not (su == 1 and i == 7): a(f"s_add_u32 s8, s8, s{98 if i < 7 else 99}")
    a("v_lshl_add_u32 v35, v7, 4, v2"); a("s_lshl_b32 s4, s82, 7"); a("v_add_u32 v35, s4, v35")
    a("s_cmp_lg_u32 s10, 0"); a("s_cbranch_scc1 L_s1_wxn")
    U = 104
    U2 = 72
    a(f"s_waitcnt vmcnt(16)")
    for k in range(16):
        a(f"v_lshlrev_b32 v{U+2*k}, 16, v{XS+k}"); a(f"v_and_b32 v{U+2*k+1}, s81, v{XS+k}")
    S0, S1, S2, S3, TT = 24, 25, 26, 27, 28
    for ci, sreg in enumerate((S0, S1, S2, S3)):
        a(f"v_add_f32 v{sreg}, v{U+ci}, v{U+4+ci}")
    for k in range(8, 32):
        sreg = (S0, S1, S2, S3)[k & 3]
        a(f"v_add_f32 v{sreg}, v{sreg}, v{U+k}")
    a(f"v_add_f32 v{S0}, v{S0}, v{S1}"); a(f"v_add_f32 v{S2}, v{S2}, v{S3}"); a(f"v_add_f32 v{S0}, v{S0}, v{S2}")
    def lred(r):
        a(f"v_add_f32_dpp v{r}, v{r}, v{r} quad_perm:[1,0,3,2] {DPPM}")
        a(f"v_add_f32_dpp v{r}, v{r}, v{r} quad_perm:[2,3,0,1] {DPPM}")
        xreduce("v_add_f32", r, TT)
    lred(S0)
    MEAN = 29
    a(f"v_mul_f32 v{MEAN}, {f2u(1.0/512):#x}, v{S0}")
    for k in range(32): a(f"v_sub_f32 v{U2+k}, v{U+k}, v{MEAN}")
    for ci, sreg in enumerate((S0, S1, S2, S3)): a(f"v_mul_f32 v{sreg}, v{U2+ci}, v{U2+ci}")
    for k in range(4, 32):
        sreg = (S0, S1, S2, S3)[k & 3]
        a(f"v_fmac_f32 v{sreg}, v{U2+k}, v{U2+k}")
    a(f"v_add_f32 v{S0}, v{S0}, v{S1}"); a(f"v_add_f32 v{S2}, v{S2}, v{S3}"); a(f"v_add_f32 v{S0}, v{S0}, v{S2}")
    lred(S0)
    a(f"v_mul_f32 v{S0}, {f2u(1.0/512):#x}, v{S0}")
    bf16r(S0); bf16r(MEAN)
    a(f"v_add_f32 v{S0}, {f2u(1e-5):#x}, v{S0}")
    bf16r(S0)
    a(f"v_sqrt_f32 v{S0}, v{S0}")
    bf16r(S0)
    RS = 30
    a(f"v_rcp_f32 v{RS}, v{S0}")
    for k in range(32): a(f"v_sub_f32 v{U+k}, v{U+k}, v{MEAN}")
    for k in range(16): a(f"v_cvt_pk_bf16_f32 v{XS+k}, v{U+2*k}, v{U+2*k+1}")
    for k in range(16): a(f"v_lshlrev_b32 v{U+2*k}, 16, v{XS+k}"); a(f"v_and_b32 v{U+2*k+1}, s81, v{XS+k}")
    for k in range(32): a(f"v_mul_f32 v{U+k}, v{U+k}, v{RS}")
    for k in range(16): a(f"v_cvt_pk_bf16_f32 v{XS+k}, v{U+2*k}, v{U+2*k+1}")
    for q in range(4): a(f"ds_write_b128 v34, v[{XS+4*q}:{XS+4*q+3}] offset:{XN_LDS + 16*q}")
    a("s_waitcnt lgkmcnt(0)")
    lds_add(F_XN)
    a("s_branch L_s1_xn")
    a("L_s1_wxn:")
    lds_spin(F_XN, 1, sleep=1)
    a("L_s1_xn:")
    for su in range(2): a(f"ds_read_b128 v[{XO+4*su}:{XO+4*su+3}], v35 offset:{XN_LDS + 64*su}")
    a("s_waitcnt lgkmcnt(0)")
    for su in range(2):
        bt = BT
        a(f"s_waitcnt vmcnt({(1 - su) * 8})")
        for p in range(4):
            r0 = WT + (su * 8 + 2 * p) * 2; r1 = r0 + 2
            for y in range(2):
                a(f"v_perm_b32 v{bt+4*(2*y)+p}, v{r1+y}, v{r0+y}, s76")
                a(f"v_perm_b32 v{bt+4*(2*y+1)+p}, v{r1+y}, v{r0+y}, s77")
        for j in range(4):
            d = ACC + 4 * j
            c = "0" if su == 0 else f"v[{d}:{d+3}]"
            a(f"v_mfma_f32_16x16x32_bf16 v[{d}:{d+3}], v[{XO+4*su}:{XO+4*su+3}], v[{bt+4*j}:{bt+4*j+3}], {c}")
    a("v_lshlrev_b32 v2, 4, v0")
    for j in range(4): a(f"v_mov_b32 v{8+j}, v{ACC+4*j}")
    a("s_cmp_eq_u32 s10, 0"); a("s_cbranch_scc1 L_s1_red")
    a("s_lshl_b32 s4, s10, 10"); a("v_add_u32 v2, s4, v2")
    a(f"ds_write_b128 v2, v[8:11] offset:{S1X - 1024}")
    a("s_waitcnt lgkmcnt(0)")
    lds_add(F_S1)
    a("s_branch L_s1_done")
    a("L_s1_red:")
    tag_wait()
    a("v_mov_b32 v27, s42")
    a("s_lshl_b32 s12, s97, 11"); a("s_lshl_b32 s4, s83, 10"); a("s_add_u32 s12, s12, s4"); a(f"s_add_u32 s12, s12, {XP:#x}")
    lds_spin(F_S1, 3, sleep=0)
    for q in range(3): a(f"ds_read_b128 v[{12+4*q}:{15+4*q}], v2 offset:{S1X + 1024*q}")
    a("s_waitcnt lgkmcnt(0)")
    for j in range(4): a(f"v_add_f32 v{8+j}, v{8+j}, v{12+j}"); a(f"v_add_f32 v{16+j}, v{16+j}, v{20+j}")
    for j in range(4): a(f"v_add_f32 v{8+j}, v{8+j}, v{16+j}")
    pack4([8, 9, 10, 11], 24, 12)
    a("buffer_store_dwordx4 v[24:27], v2, s[56:59], s12 offen sc1")
    a("s_branch L_s1_done")
    a("L_s1_skip:")
    a("L_s1_done:")
    stamp(1)
    tag_wait()
    a("s_cmp_eq_u32 s3, 9"); a("s_cbranch_scc1 L_h1")
    a("s_cmp_eq_u32 s3, 10"); a("s_cbranch_scc1 L_h2")
    a("s_cmp_eq_u32 s3, 11"); a("s_cbranch_scc1 L_h3")

    a("v_lshlrev_b32 v3, 11, v7"); a("v_lshl_add_u32 v3, v1, 4, v3")
    a("s_lshl_b32 s12, s92, 14"); a("s_lshl_b32 s4, s93, 8"); a("s_add_u32 s12, s12, s4"); a(f"s_add_u32 s12, s12, {XP:#x}"); a("s_add_u32 s13, s12, 8192")
    a("v_lshlrev_b32 v2, 7, v7"); a("v_lshl_add_u32 v2, v1, 3, v2")
    G = [40 + 4 * t for t in range(4)]
    lds_spin(F_P1, 8, sleep=4)
    mpoll("qp", [f"buffer_load_dwordx4 v[{G[t]}:{G[t]+3}], v3, s[56:59], s{12+(t>>1)} offen offset:{(t&1)*1024} sc1" for t in range(4)], G,
          sleep=opts.get("q_sleep", 2), st_cnt=5, t40=16)
    stamp(3)
    for t in range(4): unpack4(G[t], 60 + 4 * t, 20 + 2 * t)
    for c in range(2):
        for e in range(4): a(f"v_add_f32 v{60+8*c+e}, v{60+8*c+e}, v{64+8*c+e}")
    for c in range(2):
        for e in range(2): a(f"v_cvt_pk_bf16_f32 v{8+2*c+e}, v{60+8*c+2*e}, v{61+8*c+2*e}")
    for c in range(2): a(f"ds_write_b64 v2, v[{8+2*c}:{9+2*c}] offset:{Q_LDS + c*512}")
    a("s_waitcnt lgkmcnt(0)")
    lds_add(F_Q)
    stamp(4)
    stamp_out(2, 6)
    a("s_endpgm")

    a("L_h1:")
    lds_add(F_CNT)
    a("s_cmp_ge_u32 s95, 56"); a("s_cbranch_scc1 L_h1_none")
    srd(52, 32, 1792 * 1024)
    W2 = 136
    a("s_lshl_b32 s12, s95, 15"); a("s_lshl_b32 s4, s96, 8"); a("s_add_u32 s12, s12, s4"); a("s_add_u32 s13, s12, 4096")
    def w2_loads():
        a("v_lshlrev_b32 v4, 13, v7"); a("v_lshl_add_u32 v4, v1, 4, v4")
        for i in range(8): a(f"buffer_load_dwordx4 v[{W2+4*i}:{W2+4*i+3}], v4, s[52:55], s{12+(i>>2)} offen offset:{(i&3)*1024} nt")
    if not defer: w2_loads()
    a("v_lshrrev_b32 v4, 5, v0"); a("v_mul_u32_u24 v3, 57344, v4"); a("v_bfe_u32 v2, v0, 3, 2"); a("v_lshl_add_u32 v3, v2, 8, v3")
    a("v_lshlrev_b32 v8, 6, v2")
    a("v_and_b32 v2, 7, v0"); a("v_lshl_add_u32 v3, v2, 4, v3"); a("v_lshl_add_u32 v8, v2, 3, v8")
    a("s_lshr_b32 s4, s95, 1"); a("s_lshl_b32 s84, s4, 11"); a("s_and_b32 s4, s95, 1"); a("s_lshl_b32 s4, s4, 7"); a("s_add_u32 s84, s84, s4"); a(f"s_add_u32 s84, s84, {XP + 64*2048:#x}")
    lds_spin(F_P2, 8, sleep=4)
    mpoll("gp", [f"buffer_load_dwordx4 v[{40+4*t}:{43+4*t}], v3, s[56:59], s84 offen offset:{t*1024} sc1" for t in range(2)], [40, 44],
          sleep=opts.get("g_sleep", 8), t40=16)
    stamp(3)
    for t in range(2): unpack4(40 + 4 * t, 60 + 4 * t, 20 + 2 * t)
    for e in range(4): a(f"v_add_f32 v{60+e}, v{60+e}, v{64+e}")
    a("v_cvt_pk_bf16_f32 v40, v60, v61"); a("v_cvt_pk_bf16_f32 v41, v62, v63")
    a("v_mov_b32 v44, v40"); a("v_mov_b32 v45, v41")
    a("v_permlane32_swap_b32 v40, v44"); a("v_permlane32_swap_b32 v41, v45")
    ga, up, tm = 48, 52, 56
    for e in range(2):
        a(f"v_lshlrev_b32 v{ga+2*e}, 16, v{40+e}"); a(f"v_and_b32 v{ga+2*e+1}, s81, v{40+e}")
        a(f"v_lshlrev_b32 v{up+2*e}, 16, v{44+e}"); a(f"v_and_b32 v{up+2*e+1}, s81, v{44+e}")
    for e in range(4): a(f"v_mul_f32 v{tm+e}, s80, v{ga+e}")
    for e in range(4): a(f"v_exp_f32 v{tm+e}, v{tm+e}")
    for e in range(4): a(f"v_add_f32 v{tm+e}, 1.0, v{tm+e}")
    for e in range(4): a(f"v_rcp_f32 v{tm+e}, v{tm+e}")
    for e in range(4): a(f"v_mul_f32 v{tm+e}, v{ga+e}, v{tm+e}")
    for e in range(2): a(f"v_cvt_pk_bf16_f32 v{40+e}, v{tm+2*e}, v{tm+2*e+1}")
    for e in range(2): a(f"v_lshlrev_b32 v{tm+2*e}, 16, v{40+e}"); a(f"v_and_b32 v{tm+2*e+1}, s81, v{40+e}")
    for e in range(4): a(f"v_mul_f32 v{tm+e}, v{tm+e}, v{up+e}")
    for e in range(2): a(f"v_cvt_pk_bf16_f32 v{40+e}, v{tm+2*e}, v{tm+2*e+1}")
    a(f"ds_write_b64 v8, v[40:41] offset:{H_LDS}")
    a("v_lshrrev_b32 v2, 2, v1"); a("v_lshlrev_b32 v2, 6, v2"); a("v_lshl_add_u32 v2, v7, 4, v2")
    a("s_waitcnt lgkmcnt(0)")
    a(f"ds_read_b128 v[72:75], v2 offset:{H_LDS}")
    if defer:
        lds_spin(F_GO, 1, sleep=1)
        w2_loads()
    B2 = 76
    for p in range(4):
        a(f"s_waitcnt vmcnt({6-2*p})")
        r0 = W2 + 8 * p; r1 = r0 + 4
        for x in range(4):
            a(f"v_perm_b32 v{B2+4*(2*x)+p}, v{r1+x}, v{r0+x}, s76")
            a(f"v_perm_b32 v{B2+4*(2*x+1)+p}, v{r1+x}, v{r0+x}, s77")
    a("s_waitcnt lgkmcnt(0)")
    for j in range(8):
        b = B2 + 4 * j
        a(f"v_mfma_f32_16x16x32_bf16 v[{b}:{b+3}], v[72:75], v[{b}:{b+3}], 0")
    for j in range(8): a(f"v_mov_b32 v{8+j}, v{B2+4*j}")
    a("s_branch L_h1_out")
    a("L_h1_none:")
    for j in range(8): a(f"v_mov_b32 v{8+j}, 0")
    a("L_h1_out:")
    a("v_lshlrev_b32 v2, 4, v0")
    a(f"ds_write_b128 v2, v[8:11] offset:{W2R}"); a(f"ds_write_b128 v2, v[12:15] offset:{W2R+1024}")
    a("s_waitcnt lgkmcnt(0)")
    lds_add(F_W2)
    stamp(4)
    stamp_out(3, 5)
    a("s_endpgm")

    a("L_h2:")
    lds_add(F_CNT)
    srd(44, 24, 0x400000)
    a("v_lshlrev_b32 v2, 13, v7"); a("v_lshl_add_u32 v2, v1, 4, v2")
    a("s_lshl_b32 s12, s95, 16"); a("s_lshl_b32 s4, s96, 8"); a("s_add_u32 s12, s12, s4")
    a("s_add_u32 s13, s12, 4096"); a("s_add_u32 s14, s12, 32768"); a("s_add_u32 s15, s12, 36864")
    oplay = opts.get("oplay", 1)
    if oplay == 0:
        a("v_lshlrev_b32 v44, 10, v7"); a("v_lshl_add_u32 v44, v1, 4, v44")
        a("s_lshl_b32 s87, s2, 12"); a(f"s_add_u32 s87, s87, {OP:#x}")
        for jp in range(1, 4): a(f"s_add_u32 s{87+jp}, s87, {256*jp}")
    elif oplay == 1:
        a("v_lshlrev_b32 v44, 16, v7"); a("v_lshl_add_u32 v44, v1, 4, v44")
        a("s_lshl_b32 s87, s96, 18"); a("s_lshl_b32 s4, s95, 8"); a("s_add_u32 s87, s87, s4"); a(f"s_add_u32 s87, s87, {OP:#x}")
        for jp in range(1, 4): a(f"s_add_u32 s{87+jp}, s87, {16384*jp}")
    else:
        a("v_lshlrev_b32 v44, 16, v7"); a("v_lshrrev_b32 v45, 2, v1"); a("v_lshl_add_u32 v44, v45, 12, v44"); a("v_and_b32 v45, 3, v1"); a("v_lshl_add_u32 v44, v45, 4, v44")
        a("s_lshl_b32 s87, s96, 18"); a("s_lshl_b32 s4, s95, 6"); a("s_add_u32 s87, s87, s4"); a(f"s_add_u32 s87, s87, {OP:#x}")
        for jp in range(1, 4): a(f"s_add_u32 s{87+jp}, s87, {16384*jp}")
    def wo_loads():
        for u in range(2):
            for i in range(8):
                r = (8 if u == 0 else 104) + 4 * i
                a(f"buffer_load_dwordx4 v[{r}:{r+3}], v2, s[44:47], s{12+2*u+(i>>2)} offen offset:{(i&3)*1024} nt")
    if not defer: wo_loads()
    a("v_lshrrev_b32 v47, 2, v1"); a("v_lshlrev_b32 v47, 7, v47"); a("v_lshl_add_u32 v47, v7, 4, v47")
    a("v_lshlrev_b32 v46, 4, v0")
    if defer:
        lds_spin(F_GO, 1, sleep=1)
        wo_loads()
    B0, B1 = 72, 8
    for p in range(4):
        a(f"s_waitcnt vmcnt({14-2*p})")
        r0 = 8 + 8 * p; r1 = r0 + 4
        for x in range(4):
            a(f"v_perm_b32 v{B0+4*(2*x)+p}, v{r1+x}, v{r0+x}, s76")
            a(f"v_perm_b32 v{B0+4*(2*x+1)+p}, v{r1+x}, v{r0+x}, s77")
    for p in range(4):
        a(f"s_waitcnt vmcnt({6-2*p})")
        r0 = 104 + 8 * p; r1 = r0 + 4
        for x in range(4):
            a(f"v_perm_b32 v{B1+4*(2*x)+p}, v{r1+x}, v{r0+x}, s76")
            a(f"v_perm_b32 v{B1+4*(2*x+1)+p}, v{r1+x}, v{r0+x}, s77")
    lds_spin(F_W2, 1)
    a(f"ds_read_b128 v[48:51], v46 offset:{W2R}"); a(f"ds_read_b128 v[52:55], v46 offset:{W2R+1024}")
    for jp in range(4): a(f"v_mov_b32 v{106+4*jp}, s42"); a(f"v_mov_b32 v{107+4*jp}, s43")
    stamp(2)
    lds_spin(F_O, 4, sleep=0)
    stamp(3)
    a(f"ds_read_b128 v[64:67], v47 offset:{O_LDS}"); a(f"ds_read_b128 v[68:71], v47 offset:{O_LDS+64}")
    a("s_waitcnt lgkmcnt(1)" if not stamps else "s_waitcnt lgkmcnt(0)")
    for j in range(8):
        d = B0 + 4 * j
        a(f"v_mfma_f32_16x16x32_bf16 v[{d}:{d+3}], v[64:67], v[{d}:{d+3}], 0")
    a("s_waitcnt lgkmcnt(0)")
    for j in range(8):
        d = B0 + 4 * j; b = B1 + 4 * j
        a(f"v_mfma_f32_16x16x32_bf16 v[{d}:{d+3}], v[68:71], v[{b}:{b+3}], v[{d}:{d+3}]")
        if j >= 3 and j % 2 == 1:
            jp = (j - 3) // 2
            a(f"v_add_f32 v{104+4*jp}, v{B0+8*jp}, v{48+2*jp}"); a(f"v_add_f32 v{105+4*jp}, v{B0+8*jp+4}, v{49+2*jp}")
            a(f"buffer_store_dwordx4 v[{104+4*jp}:{107+4*jp}], v44, s[56:59], s{87+jp} offen sc1")
    for jp in (3,):
        a(f"v_add_f32 v{104+4*jp}, v{B0+8*jp}, v{48+2*jp}"); a(f"v_add_f32 v{105+4*jp}, v{B0+8*jp+4}, v{49+2*jp}")
        a(f"buffer_store_dwordx4 v[{104+4*jp}:{107+4*jp}], v44, s[56:59], s{87+jp} offen sc1")
    lds_add(F_PB)
    stamp(4)
    stamp_out(4, 5)
    a("s_endpgm")

    a("L_h3:")
    lds_add(F_CNT)
    srd(52, 34, 4096)
    a("s_bfe_u32 s4, s2, 0x20002"); a("s_lshl_b32 s86, s4, 10")
    a("s_and_b32 s4, s2, 3"); a("s_lshl_b32 s4, s4, 8"); a("s_add_u32 s86, s86, s4")
    a("s_lshl_b32 s4, s96, 6"); a("s_add_u32 s86, s86, s4")
    a("s_bfe_u32 s4, s2, 0x20004"); a("s_lshl_b32 s4, s4, 2"); a("s_add_u32 s86, s86, s4")
    a("v_and_b32 v40, 3, v0"); a("v_lshlrev_b32 v40, 4, v40")
    a("buffer_load_dword v41, v40, s[48:51], s86 offen")
    if opts.get("pretouch", 1):
        a("buffer_load_dword v43, v40, s[52:55], s86 offen")
    if oplay == 0:
        a("v_lshrrev_b32 v45, 2, v0"); a("v_lshl_add_u32 v45, v45, 12, v40")
        a("s_and_b32 s4, s2, 3"); a("s_lshl_b32 s88, s4, 18"); a("s_bfe_u32 s4, s2, 0x20002"); a("s_lshl_b32 s4, s4, 10"); a("s_add_u32 s88, s88, s4")
        a("s_bfe_u32 s4, s2, 0x20004"); a("s_lshl_b32 s4, s4, 8"); a("s_add_u32 s88, s88, s4"); a("s_lshl_b32 s4, s96, 6"); a("s_add_u32 s88, s88, s4"); a(f"s_add_u32 s88, s88, {OP:#x}")
        for t in range(1, 4): a(f"s_add_u32 s{88+t}, s88, {65536*t}")
    else:
        a("s_and_b32 s4, s2, 3"); a("s_lshl_b32 s88, s4, 18"); a("s_bfe_u32 s4, s2, 0x20002"); a("s_lshl_b32 s4, s4, 16"); a("s_add_u32 s88, s88, s4")
        a("s_bfe_u32 s4, s2, 0x20004"); a("s_lshl_b32 s4, s4, 14"); a("s_add_u32 s88, s88, s4"); a(f"s_add_u32 s88, s88, {OP:#x}")
        if oplay == 1:
            a("v_lshrrev_b32 v45, 2, v0"); a("v_lshl_add_u32 v45, v45, 8, v40")
            a("s_lshl_b32 s4, s96, 6"); a("s_add_u32 s88, s88, s4")
            for t in range(1, 4): a(f"s_add_u32 s{88+t}, s88, {4096*t}")
        else:
            a("v_lshlrev_b32 v45, 4, v0")
            a("s_lshl_b32 s4, s96, 12"); a("s_add_u32 s88, s88, s4")
            for t in range(1, 4): a(f"s_add_u32 s{88+t}, s88, {1024*t}")
    a("s_waitcnt vmcnt(0)")
    a("v_lshlrev_b32 v56, 16, v41"); a("v_and_b32 v57, s81, v41")
    TH = opts.get("go_th", 0)
    a("v_and_b32 v2, 31, v0"); a("v_lshlrev_b32 v2, 9, v2")
    a("s_lshl_b32 s8, s95, 14"); a(f"s_add_u32 s8, s8, {AP:#x}")
    lds_spin(F_ISS, 8)
    if TH > 0:
        a("s_mov_b32 s9, 0")
        a("s_mov_b64 exec, 0xffffffff")
        a("L_go:")
        a("buffer_load_dwordx4 v[8:11], v2, s[56:59], s8 offen offset:496 sc1")
        a("s_waitcnt vmcnt(0)")
        a("v_cmp_eq_u64 vcc, s[42:43], v[10:11]")
        a("s_bcnt1_i32_b64 s4, vcc")
        a(f"s_cmp_ge_u32 s4, {TH}"); a("s_cbranch_scc1 L_go_done")
        a(f"s_sleep {opts.get('go_sleep', 3)}")
        a("s_add_u32 s9, s9, 1"); a(f"s_cmp_lt_u32 s9, {BOUND}"); a("s_cbranch_scc1 L_go")
        a("L_go_done:")
        a("s_mov_b64 exec, -1")
    lds_add(F_GO)
    if opts.get("fin_pb", 1): lds_spin(F_PB, 1, sleep=1)
    else: lds_spin(F_O, opts.get("fin_start", 4), sleep=1)
    if opts.get("fin_delay", 12): a(f"s_sleep {opts.get('fin_delay', 12)}")
    stamp(2)
    GF = [120 + 4 * t for t in range(4)]
    mpoll("op", [f"buffer_load_dwordx4 v[{GF[t]}:{GF[t]+3}], v45, s[56:59], s{88+t} offen sc1" for t in range(4)], GF,
          sleep=opts.get("op_sleep", 0), st_cnt=5)
    stamp(3)
    for e in range(2):
        a(f"v_add_f32 v{GF[0]+e}, v{GF[0]+e}, v{GF[1]+e}"); a(f"v_add_f32 v{GF[2]+e}, v{GF[2]+e}, v{GF[3]+e}")
    for e in range(2): a(f"v_add_f32 v{GF[0]+e}, v{GF[0]+e}, v{GF[2]+e}")
    for ror in (4, 8):
        for e in range(2): a(f"v_add_f32_dpp v{GF[0]+e}, v{GF[0]+e}, v{GF[0]+e} row_ror:{ror} {DPPM}")
    for which in (16, 32): xswap("v_add_f32", [GF[0], GF[0] + 1], [GF[1], GF[1] + 1], which)
    a(f"v_add_f32 v56, v56, v{GF[0]}"); a(f"v_add_f32 v57, v57, v{GF[0]+1}")
    a("v_cvt_pk_bf16_f32 v46, v56, v57")
    a("s_mov_b64 exec, 0xf")
    a("buffer_store_dword v46, v40, s[52:55], s86 offen")
    a("s_cmp_lg_u32 s2, 0"); a("s_cbranch_scc1 L_h3_fin")
    a("s_mov_b64 exec, 1")
    a("v_mov_b32 v46, s42"); a("v_mov_b32 v47, s43")
    a("buffer_store_dwordx2 v[46:47], v5, s[56:59], 0 offen sc1")
    a("L_h3_fin:")
    a("s_mov_b64 exec, -1")
    stamp(4, True)
    stamp_out(5, 6)
    a("L_end:")
    a("s_endpgm")
    a("L_code_end:")
    a('.section .rodata,"a"'); a(".p2align 6"); a(f".amdhsa_kernel {NAME}_kernel")
    for l in (".amdhsa_next_free_vgpr 168", ".amdhsa_next_free_sgpr 102", ".amdhsa_accum_offset 168", ".amdhsa_group_segment_fixed_size 0", ".amdhsa_float_denorm_mode_32 3",
              ".amdhsa_kernarg_size 96", ".amdhsa_user_sgpr_count 2", ".amdhsa_user_sgpr_kernarg_segment_ptr 1", ".amdhsa_system_sgpr_workgroup_id_x 1"):
        a("  " + l)
    a(".end_amdhsa_kernel")
    open(out, "w").write(a.finalize())
    if opts.get("cpf", 1) and "_pcoff" not in opts:
        import subprocess
        subprocess.run(["clang", "-x", "assembler", "-target", "amdgcn-amd-amdhsa", "-mcpu=gfx950", "-c", out, "-o", "_g.o"], check=True)
        nm = subprocess.run(["llvm-objdump", "-t", "_g.o"], capture_output=True, text=True).stdout
        sym = {l.split()[-1]: int(l.split()[0], 16) for l in nm.splitlines() if ".text" in l and l[:8] == "00000000"}
        o2 = dict(opts); o2["_pcoff"] = sym["L_pcbase"] & 0xffffff00; o2["_csize"] = sym["L_code_end"]
        assert o2["_pcoff"] > 64 and o2["_csize"] > 64
        gen(out, stamps, o2)

if __name__ == "__main__":
    gen("k_final.s")
```

```python
import sys, struct
from asmlib import Asm
NAME = "parallel_sum__gqa_block_cached__glu_gated_swiglu__decode"

def f2u(x): return struct.unpack("<I", struct.pack("<f", x))[0]

QP = 0x10000
XP = 0x100000
AP = 0x200000
OP = 0x300000
STAMP = 0x8000000
F_Q, F_CNT, F_ISS, F_W2, F_O, F_S1, F_XN, F_ML, F_GO, F_P1, F_P2, F_PB = 0, 4, 8, 12, 16, 20, 24, 28, 32, 36, 40, 44
Q_LDS = 256
ML_LDS = 1280
H_LDS = 1536
O_LDS = 1792
W2R = 2304
OPART = 4352
PS = 272
WSTR = 8 * PS
S1X = OPART + 8 * WSTR
XN_LDS = S1X + 3072
LDS_BYTES = XN_LDS + 4096
BOUND = 2000000

DESIGN = """
Single persistent launch, one 12-wave workgroup per CU (generated by a hand-written python emitter).
 waves 0-7 : flash-decoding split (b, kv-head, 512 keys): K/V streamed straight into VGPRs (nt, windowed),
             QK^T / PV on 16x16x32 bf16 MFMA, true max per wave, log-sum-exp merge across waves and splits.
 waves 8-11: LayerNorm + one [256x64] tile of wq/w1/w3 (MFMA GEMV), q / SwiGLU gathers, wo/w2 tile, final reduce.
 Cross-workgroup hand-offs go through d_ws as self-validating 16-byte granules {payload, tag} written and read
 with agent-scope (sc1) vector accesses; tag = (64-bit word found at d_ws[0]) + 1, stored back at the end, so a
 launch tells its own hand-offs from older contents.  All spins are bounded.  s_sleep is only polling back-off.
"""

def gen(out, stamps=False, opts=None):
    opts = opts or {}
    global XP, AP, OP
    wo_ = opts.get("wsoff", 0)
    XP, AP, OP = 0x100000 + wo_, 0x200000 + wo_, 0x300000 + wo_
    defer = opts.get("defer", True)
    a = Asm()
    hdr = open("cdna_kernels/%s.s.ref" % NAME).read().split("; Override launch")[0]
    a.lines += hdr.strip("\n").split("\n")
    a(f"; @launch grid=(256,1,1) block=(768,1,1) lds={LDS_BYTES}")
    for l in DESIGN.strip("\n").split("\n"): a.lines.append("; " + l)
    a('.amdgcn_target "amdgcn-amd-amdhsa--gfx950"')
    a(".text"); a(f".globl {NAME}_kernel"); a(".p2align 8"); a(f".type {NAME}_kernel,@function"); a(f"{NAME}_kernel:")
    lite = opts.get("lite", 0)
    def stamp(k, force=False):
        if stamps or (lite and (k == 0 or force)): a(f"s_memrealtime s[{60+2*k}:{61+2*k}]")
    def stamp_out(role, n):
        if not (stamps or (lite and role == 5)): return
        a("s_waitcnt lgkmcnt(0)")
        a("s_mov_b64 exec, 1")
        a(f"s_mul_i32 s4, s2, {16*8*8}")
        a(f"s_add_u32 s4, s4, {STAMP + role*64}")
        a("v_mov_b32 v1, s4")
        for k in range(n):
            a(f"v_mov_b32 v2, s{60+2*k}"); a(f"v_mov_b32 v3, s{61+2*k}")
            a(f"buffer_store_dwordx2 v[2:3], v1, s[56:59], 0 offen offset:{8*k}")
        a("s_mov_b64 exec, -1")
    def srd(d, lo, size):
        a(f"s_mov_b32 s{d}, s{lo}"); a(f"s_mov_b32 s{d+1}, s{lo+1}"); a(f"s_mov_b32 s{d+2}, {size:#x}"); a(f"s_mov_b32 s{d+3}, 0x20000")
    uid = [0]
    def lds_spin(off, val, sleep=2):
        uid[0] += 1; L = f"L_spin{uid[0]}"
        a("s_mov_b32 s5, 0")
        a(f"{L}:")
        a(f"ds_read_b32 v4, v5 offset:{off}")
        a("s_waitcnt lgkmcnt(0)")
        a("v_readfirstlane_b32 s4, v4")
        a(f"s_cmp_ge_u32 s4, {val}")
        a(f"s_cbranch_scc1 {L}_done")
        if sleep: a(f"s_sleep {sleep}")
        a("s_add_u32 s5, s5, 1")
        a(f"s_cmp_lt_u32 s5, {BOUND*4}")
        a(f"s_cbranch_scc1 {L}")
        a(f"{L}_done:")
    def lds_add(off):
        a("s_mov_b64 exec, 1")
        a(f"ds_add_u32 v5, v6 offset:{off}")
        a("s_mov_b64 exec, -1")
    def xswap(op, regs, tmps, which):
        for r, t in zip(regs, tmps): a(f"v_mov_b32 v{t}, v{r}")
        for r, t in zip(regs, tmps): a(f"v_permlane{which}_swap_b32 v{r}, v{t}")
        for r, t in zip(regs, tmps): a(f"{op} v{r}, v{r}, v{t}")
    def xreduce(op, r, t):
        xswap(op, [r], [t], 16); xswap(op, [r], [t], 32)
    DPPM = "row_mask:0xf bank_mask:0xf"
    def bf16r(r):
        a(f"v_cvt_pk_bf16_f32 v{r}, v{r}, v{r}"); a(f"v_lshlrev_b32 v{r}, 16, v{r}")
    def tag_wait():
        a("s_waitcnt lgkmcnt(0)")
        a("s_add_u32 s42, s40, 1"); a("s_addc_u32 s43, s41, 0"); a("s_and_b32 s75, s43, 0xff")
    MASKS = [16 + 2 * t for t in range(12)] + [84 + 2 * t for t in range(4)]
    def mpoll(name, loads, regs, sleep=0, st_cnt=None, t40=None):
        n = len(loads)
        a("s_mov_b32 s9, 0")
        for t in range(n): a(loads[t])
        a(f"L_{name}:")
        a("s_waitcnt vmcnt(0)")
        for t in range(n):
            m = MASKS[t]
            if t40 is None:
                a(f"v_cmp_ne_u64 s[{m}:{m+1}], v[{regs[t]+2}:{regs[t]+3}], s[42:43]")
            else:
                a(f"v_and_b32 v{t40+t}, 0xff, v{regs[t]+2}")
                a(f"v_cmp_ne_u32 s[{m}:{m+1}], s42, v{regs[t]+3}")
                a(f"v_cmp_ne_u32 vcc, s75, v{t40+t}")
                a(f"s_or_b64 s[{m}:{m+1}], s[{m}:{m+1}], vcc")
        if n == 1: a(f"s_mov_b64 s[6:7], s[{MASKS[0]}:{MASKS[0]+1}]")
        else: a(f"s_or_b64 s[6:7], s[{MASKS[0]}:{MASKS[0]+1}], s[{MASKS[1]}:{MASKS[1]+1}]")
        for t in range(2, n): a(f"s_or_b64 s[6:7], s[6:7], s[{MASKS[t]}:{MASKS[t]+1}]")
        a("s_cmp_eq_u64 s[6:7], 0"); a(f"s_cbranch_scc1 L_{name}_done")
        a("s_add_u32 s9, s9, 1"); a(f"s_cmp_ge_u32 s9, {BOUND}"); a(f"s_cbranch_scc1 L_{name}_done")
        if sleep: a(f"s_sleep {sleep}")
        for t in range(n):
            m = MASKS[t]
            a(f"s_mov_b64 exec, s[{m}:{m+1}]")
            a(f"s_cbranch_execz L_{name}_sk{t}")
            a(loads[t])
            a(f"L_{name}_sk{t}:")
        a("s_mov_b64 exec, -1")
        a(f"s_branch L_{name}")
        a(f"L_{name}_done:")
        if stamps and st_cnt is not None:
            a("s_waitcnt lgkmcnt(0)")
            a(f"s_mul_i32 s4, s9, 100"); a(f"s_add_u32 s{60+2*st_cnt}, s60, s4"); a(f"s_addc_u32 s{61+2*st_cnt}, s61, 0")

    def ppoll(name, loads, regs, sleep=1, many=64):
        n = len(loads)
        a("s_mov_b32 s9, 0")
        a("s_not_b32 s4, s42")
        for t in range(n): a(f"v_mov_b32 v{regs[t]+2}, s4")
        a("s_mov_b32 exec_lo, 0x80000000"); a("s_mov_b32 exec_hi, 0x80000000")
        for t in range(n): a(loads[t])
        a("s_mov_b64 exec, -1")
        a(f"L_{name}:")
        a("s_waitcnt vmcnt(0)")
        for t in range(n):
            m = MASKS[t]
            a(f"v_cmp_ne_u64 s[{m}:{m+1}], v[{regs[t]+2}:{regs[t]+3}], s[42:43]")
        a(f"s_bcnt1_i32_b64 s5, s[{MASKS[0]}:{MASKS[0]+1}]")
        for t in range(1, n):
            a(f"s_bcnt1_i32_b64 s4, s[{MASKS[t]}:{MASKS[t]+1}]"); a("s_add_u32 s5, s5, s4")
        a("s_cmp_eq_u32 s5, 0"); a(f"s_cbranch_scc1 L_{name}_done")
        a("s_add_u32 s9, s9, 1"); a(f"s_cmp_ge_u32 s9, {BOUND}"); a(f"s_cbranch_scc1 L_{name}_done")
        a(f"s_cmp_le_u32 s5, {many}"); a(f"s_cbranch_scc1 L_{name}_full")
        if sleep: a(f"s_sleep {sleep}")
        for t in range(n):
            m = MASKS[t]
            for h in range(2):
                a(f"s_and_b32 s4, s{m+h}, 0x80000000"); a(f"s_cselect_b32 s{m+h}, s4, s{m+h}")
        a(f"L_{name}_full:")
        for t in range(n):
            m = MASKS[t]
            a(f"s_mov_b64 exec, s[{m}:{m+1}]")
            a(f"s_cbranch_execz L_{name}_sk{t}")
            a(loads[t])
            a(f"L_{name}_sk{t}:")
        a("s_mov_b64 exec, -1")
        a(f"s_branch L_{name}")
        a(f"L_{name}_done:")

    def pack4(r, d, t):
        for x in r: a(f"v_add_u32 v{x}, 0x200, v{x}")
        a(f"v_lshrrev_b32 v{t}, 22, v{r[3]}"); a(f"v_bfe_u32 v{t+1}, v{r[3]}, 12, 10"); a(f"v_bfe_u32 v{t+2}, v{r[3]}, 10, 2")
        a(f"v_and_or_b32 v{d}, v{r[0]}, s73, v{t}"); a(f"v_and_or_b32 v{d+1}, v{r[1]}, s73, v{t+1}")
        a(f"v_lshl_or_b32 v{t+2}, v{t+2}, 8, s75"); a(f"v_and_or_b32 v{d+2}, v{r[2]}, s73, v{t+2}")
    def unpack4(d, o, t):
        a(f"v_lshlrev_b32 v{o+3}, 22, v{d}"); a(f"v_and_b32 v{t}, 0x3ff, v{d+1}"); a(f"v_bfe_u32 v{t+1}, v{d+2}, 8, 2")
        a(f"v_and_b32 v{o}, s73, v{d}"); a(f"v_and_b32 v{o+1}, s73, v{d+1}"); a(f"v_and_b32 v{o+2}, s73, v{d+2}")
        a(f"v_lshl_or_b32 v{o+3}, v{t}, 12, v{o+3}"); a(f"v_lshl_or_b32 v{o+3}, v{t+1}, 10, v{o+3}")
    a("s_cmp_ge_u32 s2, 256"); a("s_cbranch_scc1 L_end")
    stamp(0)
    if opts.get("dbgspan"): a("s_memrealtime s[74:75]")
    a("s_load_dwordx16 s[16:31], s[0:1], 0")
    a("s_load_dwordx8 s[32:39], s[0:1], 64")
    a("v_lshrrev_b32 v1, 6, v0")
    a("v_and_b32 v0, 63, v0")
    a("v_readfirstlane_b32 s3, v1")
    a("v_mov_b32 v5, 0"); a("v_mov_b32 v6, 1")
    a("s_mov_b32 s76, 0x05040100"); a("s_mov_b32 s77, 0x07060302")
    a(f"s_mov_b32 s78, {f2u(1.4426950408889634):#x}")
    a(f"s_mov_b32 s79, {f2u(128 ** -0.5):#x}")
    a(f"s_mov_b32 s80, {f2u(-1.4426950408889634):#x}")
    a("s_mov_b32 s81, 0xffff0000")
    a("v_lshlrev_b32 v2, 2, v0"); a("s_mov_b64 exec, 0xffff"); a("ds_write_b32 v2, v5"); a("s_mov_b64 exec, -1")
    a("v_and_b32 v1, 15, v0")
    a("v_lshrrev_b32 v7, 4, v0")
    a("s_bfe_u32 s92, s2, 0x30003"); a("s_lshr_b32 s93, s2, 6"); a("s_and_b32 s94, s2, 7"); a("s_and_b32 s95, s2, 63"); a("s_lshr_b32 s96, s2, 6")
    a("s_waitcnt lgkmcnt(0)")
    a("s_load_dwordx2 s[40:41], s[38:39], 0")
    srd(56, 38, 0x10000000)
    a("s_cmp_ge_u32 s3, 8"); a("s_cbranch_scc1 L_helper")

    KR, VR, QB, PR = 8, 72, 136, 140
    srd(44, 18, 0x2000000); srd(48, 20, 0x2000000)
    pat = opts.get("pat", 3)
    SS, AS, IS = {0: (131072, 16384, 1024), 1: (16384, 131072, 1024), 2: (1024, 131072, 8192), 3: (131072, 1024, 8192),
                  4: (1024, 8192, 65536), 5: (8192, 1024, 65536)}[pat]
    a("s_lshr_b32 s52, s2, 3"); a("s_lshl_b32 s52, s52, 20"); a(f"s_mul_i32 s4, s94, {SS}"); a("s_add_u32 s52, s52, s4")
    a(f"s_mul_i32 s4, s3, {AS}"); a("s_add_u32 s52, s52, s4")
    a("v_lshrrev_b32 v2, 2, v1"); a("v_lshlrev_b32 v2, 8, v2"); a("v_lshl_add_u32 v2, v7, 6, v2")
    a("v_and_b32 v3, 3, v1"); a("v_lshl_add_u32 v2, v3, 4, v2")
    a("v_lshlrev_b32 v3, 4, v0")
    thr = [opts.get("thr", 3)]
    thr2 = opts.get("thr2", 8)
    QW = opts.get("qw", 8)
    nld = [0]
    def ld(kind, i):
        if kind == "V" and i >= QW: thr[0] = thr2
        if nld[0] >= thr[0]: a(f"s_waitcnt vmcnt({thr[0]-1})")
        nld[0] += 1
        a(f"s_add_u32 s53, s52, {i*IS}")
        if kind == "K": a(f"buffer_load_dwordx4 v[{KR+4*i}:{KR+4*i+3}], v2, s[44:47], s53 offen nt")
        else: a(f"buffer_load_dwordx4 v[{VR+4*i}:{VR+4*i+3}], v3, s[48:51], s53 offen nt")
        n_ = i + (16 if kind == "V" else 0) + 1
        if n_ == opts.get("p1", 13): lds_add(F_P1)
        if n_ == opts.get("p2", 22): lds_add(F_P2)
    for i in range(16):
        if i == thr[0]:
            a("s_barrier")
            if opts.get("prof"): stamp(5)
        ld("K", i)
        if opts.get("prof") and i == 7: stamp(6)
    if opts.get("prof"): stamp(7)
    for i in range(QW): ld("V", i)
    stamp(1)
    tag_wait()
    lds_spin(F_Q, 1)
    stamp(2)
    a(f"ds_read_b128 v[{QB}:{QB+3}], v2 offset:{Q_LDS}")
    vnext = [QW]
    def nextv():
        if vnext[0] < 16:
            ld("V", vnext[0]); vnext[0] += 1
            if vnext[0] == opts.get("isspt", 16): lds_add(F_ISS)
    nextv()
    if QW + 1 < thr2: a(f"s_waitcnt vmcnt({QW+1})")
    a("s_waitcnt lgkmcnt(0)")
    for i in range(16):
        k = KR + 4 * i
        a(f"v_mfma_f32_16x16x32_bf16 v[{k}:{k+3}], v[{k}:{k+3}], v[{QB}:{QB+3}], 0")
    nextv()
    for grp in range(4):
        for c in range(4):
            for i in range(grp * 4, grp * 4 + 4):
                k = KR + 4 * i
                if c == 0: a(f"v_mov_b32_dpp v{k}, v{k} quad_perm:[0,0,0,0] {DPPM}")
                else: a(f"v_add_f32_dpp v{k}, v{k+c}, v{k} quad_perm:[{c},{c},{c},{c}] {DPPM}")
    nextv()
    T = [KR + 4 * i for i in range(16)]
    for step in range(5):
        for i in range(0, 16, 2):
            t0, t1, pk = T[i], T[i + 1], T[i] + 1
            if step == 0: a(f"v_cvt_pk_bf16_f32 v{pk}, v{t0}, v{t1}")
            if step == 1: a(f"v_lshlrev_b32 v{t0}, 16, v{pk}"); a(f"v_and_b32 v{t1}, s81, v{pk}")
            if step == 2: a(f"v_mul_f32 v{t0}, s79, v{t0}"); a(f"v_mul_f32 v{t1}, s79, v{t1}")
            if step == 3: a(f"v_cvt_pk_bf16_f32 v{pk}, v{t0}, v{t1}")
            if step == 4: a(f"v_lshlrev_b32 v{t0}, 16, v{pk}"); a(f"v_and_b32 v{t1}, s81, v{pk}")
    nextv()
    M, Lr, TMP, NM = 148, 149, 150, 151
    a(f"v_max3_f32 v{M}, v{T[0]}, v{T[1]}, v{T[2]}")
    a(f"v_max3_f32 v{TMP}, v{T[3]}, v{T[4]}, v{T[5]}")
    a(f"v_max3_f32 v{M}, v{M}, v{T[6]}, v{T[7]}")
    a(f"v_max3_f32 v{TMP}, v{TMP}, v{T[8]}, v{T[9]}")
    a(f"v_max3_f32 v{M}, v{M}, v{T[10]}, v{T[11]}")
    a(f"v_max3_f32 v{TMP}, v{TMP}, v{T[12]}, v{T[13]}")
    a(f"v_max3_f32 v{M}, v{M}, v{T[14]}, v{T[15]}")
    a(f"v_max_f32 v{M}, v{M}, v{TMP}")
    xreduce("v_max_f32", M, TMP)
    a(f"v_mul_f32 v{NM}, s80, v{M}")
    for i in range(16): a(f"v_fma_f32 v{T[i]}, v{T[i]}, s78, v{NM}")
    for i in range(16): a(f"v_exp_f32 v{T[i]}, v{T[i]}")
    nextv()
    for k in range(8): a(f"v_cvt_pk_bf16_f32 v{PR+k}, v{T[2*k]}, v{T[2*k+1]}")
    a(f"v_add_f32 v{Lr}, v{T[0]}, v{T[1]}"); a(f"v_add_f32 v{TMP}, v{T[2]}, v{T[3]}")
    for i in range(4, 16, 2):
        a(f"v_add_f32 v{Lr}, v{Lr}, v{T[i]}"); a(f"v_add_f32 v{TMP}, v{TMP}, v{T[i+1]}")
    a(f"v_add_f32 v{Lr}, v{Lr}, v{TMP}")
    xreduce("v_add_f32", Lr, TMP)
    a(f"s_mul_i32 s4, s3, {WSTR}")
    a(f"v_lshl_add_u32 v152, v0, 2, s4")
    a("v_lshrrev_b32 v153, 2, v0"); a("v_lshlrev_b32 v153, 6, v153"); a("s_lshl_b32 s4, s3, 3"); a("v_add_u32 v153, s4, v153")
    a("s_mov_b64 exec, 0x1111")
    a(f"ds_write_b64 v153, v[{M}:{M+1}] offset:{ML_LDS}")
    a("s_waitcnt lgkmcnt(0)")
    a("s_mov_b64 exec, 1")
    a(f"ds_add_u32 v5, v6 offset:{F_ML}")
    a("s_mov_b64 exec, -1")
    stamp(3)
    nextv()
    DO = 40
    BOs = (8, VR)
    def vwait(i):
        outstanding_after = vnext[0] - 1 - i
        if outstanding_after < thr[0]: a(f"s_waitcnt vmcnt({outstanding_after})")
    def perms(u, p):
        BO = BOs[u]
        i = 8 * u + 2 * p
        vwait(i + 1)
        r0, r1 = VR + 4 * i, VR + 4 * (i + 1)
        for x in range(4):
            a(f"v_perm_b32 v{BO+4*(2*x)+p}, v{r1+x}, v{r0+x}, s76")
            a(f"v_perm_b32 v{BO+4*(2*x+1)+p}, v{r1+x}, v{r0+x}, s77")
    def mfmas(u):
        for j in range(8):
            d = DO + 4 * j; b = BOs[u] + 4 * j
            c = "0" if u == 0 else f"v[{d}:{d+3}]"
            a(f"v_mfma_f32_16x16x32_bf16 v[{d}:{d+3}], v[{PR+4*u}:{PR+4*u+3}], v[{b}:{b+3}], {c}")
    nextv(); nextv()
    while vnext[0] < 16: nextv()
    for p in range(4): perms(0, p)
    mfmas(0)
    a("v_and_b32 v154, 31, v0")
    a("v_lshrrev_b32 v155, 5, v0")
    a("s_cmp_ge_u32 s3, 4"); a("s_cbranch_scc1 L_pre_hi")
    a(f"v_and_b32 v156, 3, v154"); a(f"v_mul_u32_u24 v156, {2*PS}, v156")
    a("v_lshrrev_b32 v157, 2, v154"); a("v_lshl_add_u32 v157, v155, 3, v157"); a("s_lshl_b32 s4, s3, 4"); a("v_add_u32 v157, s4, v157")
    a("v_lshl_add_u32 v156, v157, 2, v156")
    a("s_lshl_b32 s4, s3, 6"); a("v_mov_b32 v157, s4")
    a("v_lshlrev_b32 v158, 13, v155"); a("v_lshl_add_u32 v158, v154, 3, v158")
    a("s_lshl_b32 s4, s92, 2"); a("s_add_u32 s4, s4, s3"); a("s_lshl_b32 s8, s4, 14")
    a("s_lshl_b32 s4, s93, 11"); a("s_add_u32 s8, s8, s4")
    a("s_lshl_b32 s4, s94, 8"); a("s_add_u32 s8, s8, s4"); a(f"s_add_u32 s8, s8, {AP:#x}")
    a("v_mov_b32 v163, s42")
    a("s_branch L_pre_done")
    a("L_pre_hi:")
    a("v_and_b32 v159, 3, v0"); a("v_lshl_add_u32 v159, v7, 2, v159")
    a("v_bfe_u32 v158, v0, 2, 2"); a("v_lshlrev_b32 v158, 8, v158"); a("v_lshl_add_u32 v158, v159, 4, v158")
    a("s_lshl_b32 s8, s95, 13"); a("s_sub_u32 s4, s3, 4"); a("s_lshl_b32 s10, s4, 11"); a("s_add_u32 s8, s8, s10"); a(f"s_add_u32 s8, s8, {AP:#x}")
    a("s_lshl_b32 s4, s4, 7"); a("v_lshl_add_u32 v156, v159, 3, s4")
    a("L_pre_done:")
    for p in range(4): perms(1, p)
    mfmas(1)
    stamp(4)
    for j in range(8):
        a(f"ds_write_b32 v152, v{DO+4*j} offset:{OPART + j*PS}")
    a("s_waitcnt lgkmcnt(0)")
    lds_add(F_CNT)
    a("s_cmp_ge_u32 s3, 4"); a("s_cbranch_scc1 L_poller")
    lds_spin(F_ML, 8, sleep=0)
    for q in range(4): a(f"ds_read_b128 v[{16+4*q}:{19+4*q}], v157 offset:{ML_LDS + 16*q}")
    a("s_waitcnt lgkmcnt(0)")
    ms = [16 + 2 * w for w in range(8)]
    a(f"v_max3_f32 v48, v{ms[0]}, v{ms[1]}, v{ms[2]}"); a(f"v_max3_f32 v49, v{ms[3]}, v{ms[4]}, v{ms[5]}")
    a(f"v_max3_f32 v48, v48, v{ms[6]}, v{ms[7]}"); a("v_max_f32 v48, v48, v49")
    a("v_mul_f32 v49, s80, v48")
    for w in range(8): a(f"v_fma_f32 v{ms[w]}, v{ms[w]}, s78, v49")
    for w in range(8): a(f"v_exp_f32 v{ms[w]}, v{ms[w]}")
    a(f"v_mul_f32 v50, v{ms[0]}, v{ms[0]+1}")
    for w in range(1, 8): a(f"v_fmac_f32 v50, v{ms[w]}, v{ms[w]+1}")
    a("v_rcp_f32 v53, v50"); a("v_log_f32 v54, v50")
    for w in range(8): a(f"v_mul_f32 v{ms[w]}, v{ms[w]}, v53")
    a("v_sub_f32 v162, v54, v49")
    a("v_add_u32 v162, 0x80, v162"); a("v_and_b32 v162, 0xffffff00, v162"); a("v_or_b32 v162, s75, v162")
    lds_spin(F_CNT, 11, sleep=0)
    if not opts.get("prof"): stamp(5)
    for w in range(8):
        a(f"ds_read_b32 v{32+2*w}, v156 offset:{OPART + w*WSTR}")
        a(f"ds_read_b32 v{33+2*w}, v156 offset:{OPART + w*WSTR + PS}")
    if stamps: a("s_waitcnt lgkmcnt(0)")
    for w in range(8):
        if w % 2 == 0: a(f"s_waitcnt lgkmcnt({12 - 2*w if 12 - 2*w > 0 else 0})")
        if w < 2:
            a(f"v_mul_f32 v{51+2*w}, v{ms[w]}, v{32+2*w}"); a(f"v_mul_f32 v{52+2*w}, v{ms[w]}, v{33+2*w}")
        else:
            a(f"v_fmac_f32 v{51+2*(w&1)}, v{ms[w]}, v{32+2*w}"); a(f"v_fmac_f32 v{52+2*(w&1)}, v{ms[w]}, v{33+2*w}")
    a("v_add_f32 v51, v51, v53"); a("v_add_f32 v52, v52, v54")
    a("v_cvt_pk_bf16_f32 v160, v51, v52")
    a(f"v_mov_b32_dpp v161, v160 quad_perm:[1,1,3,3] {DPPM}")
    a("s_mov_b32 exec_lo, 0x55555555"); a("s_mov_b32 exec_hi, 0x55555555")
    a("buffer_store_dwordx4 v[160:163], v158, s[56:59], s8 offen sc1")
    a("s_mov_b64 exec, -1")
    if not opts.get("prof"): stamp(6)
    if stamps:
        a("s_cmp_eq_u32 s3, 0"); a("s_cbranch_scc0 L_end")
        stamp_out(0, 8)
    a("s_endpgm")
    a("L_poller:")
    G2 = [8, 12]
    aploads = [f"buffer_load_dwordx4 v[{G2[t]}:{G2[t]+3}], v158, s[56:59], s8 offen offset:{t*1024} sc1" for t in range(2)]
    mpoll("ap", aploads, G2, sleep=opts.get("ap_sleep", 1), t40=16)
    stamp(5)
    for t in range(2): a(f"v_and_b32 v{G2[t]+2}, 0xffffff00, v{G2[t]+2}")
    a("v_max_f32 v24, v10, v14")
    U8 = [32 + k for k in range(8)]
    def unp(t, e):
        a(f"v_lshlrev_b32 v{U8[4*t+2*e]}, 16, v{G2[t]+e}"); a(f"v_and_b32 v{U8[4*t+2*e+1]}, s81, v{G2[t]+e}")
    unp(0, 0)
    a(f"v_max_f32_dpp v24, v24, v24 row_ror:4 {DPPM}")
    unp(0, 1)
    a(f"v_max_f32_dpp v24, v24, v24 row_ror:8 {DPPM}")
    unp(1, 0)
    for t in range(2): a(f"v_sub_f32 v{G2[t]+2}, v{G2[t]+2}, v24")
    for t in range(2): a(f"v_exp_f32 v{G2[t]+2}, v{G2[t]+2}")
    unp(1, 1)
    a("v_add_f32 v26, v10, v14")
    for k in range(4): a(f"v_mul_f32 v{27+k}, v10, v{U8[k]}")
    for k in range(4): a(f"v_fmac_f32 v{27+k}, v14, v{U8[4+k]}")
    for ror in (4, 8):
        for r in (26, 27, 28, 29, 30): a(f"v_add_f32_dpp v{r}, v{r}, v{r} row_ror:{ror} {DPPM}")
    a("v_rcp_f32 v26, v26")
    for k in range(4): a(f"v_mul_f32 v{27+k}, v{27+k}, v26")
    a("v_cvt_pk_bf16_f32 v32, v27, v28"); a("v_cvt_pk_bf16_f32 v33, v29, v30")
    a(f"ds_write_b64 v156, v[32:33] offset:{O_LDS}")
    a("s_waitcnt lgkmcnt(0)")
    lds_add(F_O)
    if not opts.get("prof"): stamp(6)
    if stamps:
        a("s_cmp_eq_u32 s3, 7"); a("s_cbranch_scc0 L_end")
        stamp_out(1, 8)
    a("s_endpgm")

    a("L_helper:")
    a("s_barrier")
    a("s_setprio 3")
    a("s_mov_b32 s73, 0xfffffc00")
    if opts.get("cpf", 1):
        a("s_cmp_lg_u32 s3, 11"); a("s_cbranch_scc1 L_nocpf")
        a("s_getpc_b64 s[100:101]")
        a("L_pcbase:")
        a("s_and_b32 s100, s100, 0xffffff00")
        a(f"s_sub_u32 s100, s100, {opts.get('_pcoff', 0x1000):#x}"); a("s_subb_u32 s101, s101, 0")
        a("s_lshr_b32 s4, s2, 3"); a("s_and_b32 s4, s4, 7"); a("s_lshl_b32 s4, s4, 12")
        a("v_lshl_add_u32 v2, v0, 6, s4")
        a(f"v_cmp_gt_u32 vcc, {opts.get('_csize', 0x1000):#x}, v2")
        a("s_and_saveexec_b64 s[6:7], vcc")
        a("s_cbranch_execz L_cpf_x")
        a("global_load_dword v160, v2, s[100:101]")
        a("L_cpf_x:")
        a("s_mov_b64 exec, -1")
        a("L_nocpf:")
    srd(48, 16, 4096)
    a("s_sub_u32 s10, s3, 8")
    XS, XO, WT, BT, ACC = 8, 24, 40, 104, 120
    a("s_cmp_ge_u32 s2, 240"); a("s_cbranch_scc1 L_s1_skip")
    a("s_lshr_b32 s97, s2, 4"); a("s_lshl_b32 s97, s97, 3"); a("s_add_u32 s97, s97, s94"); a("s_bfe_u32 s83, s2, 0x10003")
    a("s_mov_b32 s44, s22"); a("s_mov_b32 s45, s23"); a("s_mov_b32 s46, 0x400000"); a("s_mov_b32 s98, 8192"); a("s_lshl_b32 s11, s97, 7")
    a("s_cmp_lt_u32 s2, 128"); a("s_cbranch_scc1 L_s1_sel")
    a("s_mov_b32 s44, s28"); a("s_mov_b32 s45, s29"); a(f"s_mov_b32 s46, {512*3584:#x}"); a("s_mov_b32 s98, 3584"); a("s_sub_u32 s4, s97, 64"); a("s_lshl_b32 s11, s4, 7")
    a("s_cmp_lt_u32 s97, 92"); a("s_cbranch_scc1 L_s1_sel")
    a("s_mov_b32 s44, s30"); a("s_mov_b32 s45, s31"); a("s_sub_u32 s4, s97, 92"); a("s_lshl_b32 s11, s4, 7")
    a("L_s1_sel:")
    a("s_mov_b32 s47, 0x20000")
    a("v_lshrrev_b32 v2, 2, v1"); a("v_lshlrev_b32 v2, 10, v2")
    a("s_lshl_b32 s82, s83, 2"); a("s_add_u32 s82, s82, s10")
    a("s_cmp_lg_u32 s10, 0"); a("s_cbranch_scc1 L_s1_nox")
    a("v_and_b32 v34, 3, v0"); a("v_lshl_add_u32 v34, v7, 2, v34"); a("v_lshl_add_u32 v34, v34, 6, v2")
    for q in range(4): a(f"buffer_load_dwordx4 v[{XS+4*q}:{XS+4*q+3}], v34, s[48:51], 0 offen offset:{16*q}")
    a("L_s1_nox:")
    a("s_lshl_b32 s4, s98, 3"); a("v_mul_lo_u32 v3, v7, s4"); a("v_lshl_add_u32 v3, v1, 3, v3")
    a("s_lshl_b32 s4, s98, 6"); a("s_mul_i32 s8, s82, s4"); a("s_add_u32 s8, s8, s11")
    a("s_mul_i32 s99, s98, 25")
    for su in range(2):
        for i in range(8):
            r = WT + (su * 8 + i) * 2
            a(f"buffer_load_dwordx2 v[{r}:{r+1}], v3, s[44:47], s8 offen nt")
            if not (su == 1 and i == 7): a(f"s_add_u32 s8, s8, s{98 if i < 7 else 99}")
    a("v_lshl_add_u32 v35, v7, 4, v2"); a("s_lshl_b32 s4, s82, 7"); a("v_add_u32 v35, s4, v35")
    a("s_cmp_lg_u32 s10, 0"); a("s_cbranch_scc1 L_s1_wxn")
    U = 104
    U2 = 72
    a(f"s_waitcnt vmcnt(16)")
    for k in range(16):
        a(f"v_lshlrev_b32 v{U+2*k}, 16, v{XS+k}"); a(f"v_and_b32 v{U+2*k+1}, s81, v{XS+k}")
    S0, S1, S2, S3, TT = 24, 25, 26, 27, 28
    for ci, sreg in enumerate((S0, S1, S2, S3)):
        a(f"v_add_f32 v{sreg}, v{U+ci}, v{U+4+ci}")
    for k in range(8, 32):
        sreg = (S0, S1, S2, S3)[k & 3]
        a(f"v_add_f32 v{sreg}, v{sreg}, v{U+k}")
    a(f"v_add_f32 v{S0}, v{S0}, v{S1}"); a(f"v_add_f32 v{S2}, v{S2}, v{S3}"); a(f"v_add_f32 v{S0}, v{S0}, v{S2}")
    def lred(r):
        a(f"v_add_f32_dpp v{r}, v{r}, v{r} quad_perm:[1,0,3,2] {DPPM}")
        a(f"v_add_f32_dpp v{r}, v{r}, v{r} quad_perm:[2,3,0,1] {DPPM}")
        xreduce("v_add_f32", r, TT)
    lred(S0)
    MEAN = 29
    a(f"v_mul_f32 v{MEAN}, {f2u(1.0/512):#x}, v{S0}")
    for k in range(32): a(f"v_sub_f32 v{U2+k}, v{U+k}, v{MEAN}")
    for ci, sreg in enumerate((S0, S1, S2, S3)): a(f"v_mul_f32 v{sreg}, v{U2+ci}, v{U2+ci}")
    for k in range(4, 32):
        sreg = (S0, S1, S2, S3)[k & 3]
        a(f"v_fmac_f32 v{sreg}, v{U2+k}, v{U2+k}")
    a(f"v_add_f32 v{S0}, v{S0}, v{S1}"); a(f"v_add_f32 v{S2}, v{S2}, v{S3}"); a(f"v_add_f32 v{S0}, v{S0}, v{S2}")
    lred(S0)
    a(f"v_mul_f32 v{S0}, {f2u(1.0/512):#x}, v{S0}")
    bf16r(S0); bf16r(MEAN)
    a(f"v_add_f32 v{S0}, {f2u(1e-5):#x}, v{S0}")
    bf16r(S0)
    a(f"v_sqrt_f32 v{S0}, v{S0}")
    bf16r(S0)
    RS = 30
    a(f"v_rcp_f32 v{RS}, v{S0}")
    for k in range(32): a(f"v_sub_f32 v{U+k}, v{U+k}, v{MEAN}")
    for k in range(16): a(f"v_cvt_pk_bf16_f32 v{XS+k}, v{U+2*k}, v{U+2*k+1}")
    for k in range(16): a(f"v_lshlrev_b32 v{U+2*k}, 16, v{XS+k}"); a(f"v_and_b32 v{U+2*k+1}, s81, v{XS+k}")
    for k in range(32): a(f"v_mul_f32 v{U+k}, v{U+k}, v{RS}")
    for k in range(16): a(f"v_cvt_pk_bf16_f32 v{XS+k}, v{U+2*k}, v{U+2*k+1}")
    for q in range(4): a(f"ds_write_b128 v34, v[{XS+4*q}:{XS+4*q+3}] offset:{XN_LDS + 16*q}")
    a("s_waitcnt lgkmcnt(0)")
    lds_add(F_XN)
    a("s_branch L_s1_xn")
    a("L_s1_wxn:")
    lds_spin(F_XN, 1, sleep=1)
    a("L_s1_xn:")
    for su in range(2): a(f"ds_read_b128 v[{XO+4*su}:{XO+4*su+3}], v35 offset:{XN_LDS + 64*su}")
    a("s_waitcnt lgkmcnt(0)")
    for su in range(2):
        bt = BT
        a(f"s_waitcnt vmcnt({(1 - su) * 8})")
        for p in range(4):
            r0 = WT + (su * 8 + 2 * p) * 2; r1 = r0 + 2
            for y in range(2):
                a(f"v_perm_b32 v{bt+4*(2*y)+p}, v{r1+y}, v{r0+y}, s76")
                a(f"v_perm_b32 v{bt+4*(2*y+1)+p}, v{r1+y}, v{r0+y}, s77")
        for j in range(4):
            d = ACC + 4 * j
            c = "0" if su == 0 else f"v[{d}:{d+3}]"
            a(f"v_mfma_f32_16x16x32_bf16 v[{d}:{d+3}], v[{XO+4*su}:{XO+4*su+3}], v[{bt+4*j}:{bt+4*j+3}], {c}")
    a("v_lshlrev_b32 v2, 4, v0")
    for j in range(4): a(f"v_mov_b32 v{8+j}, v{ACC+4*j}")
    a("s_cmp_eq_u32 s10, 0"); a("s_cbranch_scc1 L_s1_red")
    a("s_lshl_b32 s4, s10, 10"); a("v_add_u32 v2, s4, v2")
    a(f"ds_write_b128 v2, v[8:11] offset:{S1X - 1024}")
    a("s_waitcnt lgkmcnt(0)")
    lds_add(F_S1)
    a("s_branch L_s1_done")
    a("L_s1_red:")
    tag_wait()
    a("v_mov_b32 v27, s42")
    a("s_lshl_b32 s12, s97, 11"); a("s_lshl_b32 s4, s83, 10"); a("s_add_u32 s12, s12, s4"); a(f"s_add_u32 s12, s12, {XP:#x}")
    lds_spin(F_S1, 3, sleep=0)
    for q in range(3): a(f"ds_read_b128 v[{12+4*q}:{15+4*q}], v2 offset:{S1X + 1024*q}")
    a("s_waitcnt lgkmcnt(0)")
    for j in range(4): a(f"v_add_f32 v{8+j}, v{8+j}, v{12+j}"); a(f"v_add_f32 v{16+j}, v{16+j}, v{20+j}")
    for j in range(4): a(f"v_add_f32 v{8+j}, v{8+j}, v{16+j}")
    pack4([8, 9, 10, 11], 24, 12)
    a("buffer_store_dwordx4 v[24:27], v2, s[56:59], s12 offen sc1")
    a("s_branch L_s1_done")
    a("L_s1_skip:")
    a("L_s1_done:")
    stamp(1)
    tag_wait()
    a("s_cmp_eq_u32 s3, 9"); a("s_cbranch_scc1 L_h1")
    a("s_cmp_eq_u32 s3, 10"); a("s_cbranch_scc1 L_h2")
    a("s_cmp_eq_u32 s3, 11"); a("s_cbranch_scc1 L_h3")

    a("v_lshlrev_b32 v3, 11, v7"); a("v_lshl_add_u32 v3, v1, 4, v3")
    a("s_lshl_b32 s12, s92, 14"); a("s_lshl_b32 s4, s93, 8"); a("s_add_u32 s12, s12, s4"); a(f"s_add_u32 s12, s12, {XP:#x}"); a("s_add_u32 s13, s12, 8192")
    a("v_lshlrev_b32 v2, 7, v7"); a("v_lshl_add_u32 v2, v1, 3, v2")
    G = [40 + 4 * t for t in range(4)]
    lds_spin(F_P1, 8, sleep=4)
    mpoll("qp", [f"buffer_load_dwordx4 v[{G[t]}:{G[t]+3}], v3, s[56:59], s{12+(t>>1)} offen offset:{(t&1)*1024} sc1" for t in range(4)], G,
          sleep=opts.get("q_sleep", 2), st_cnt=5, t40=16)
    stamp(3)
    for t in range(4): unpack4(G[t], 60 + 4 * t, 20 + 2 * t)
    for c in range(2):
        for e in range(4): a(f"v_add_f32 v{60+8*c+e}, v{60+8*c+e}, v{64+8*c+e}")
    for c in range(2):
        for e in range(2): a(f"v_cvt_pk_bf16_f32 v{8+2*c+e}, v{60+8*c+2*e}, v{61+8*c+2*e}")
    for c in range(2): a(f"ds_write_b64 v2, v[{8+2*c}:{9+2*c}] offset:{Q_LDS + c*512}")
    a("s_waitcnt lgkmcnt(0)")
    lds_add(F_Q)
    stamp(4)
    stamp_out(2, 6)
    a("s_endpgm")

    a("L_h1:")
    lds_add(F_CNT)
    a("s_cmp_ge_u32 s95, 56"); a("s_cbranch_scc1 L_h1_none")
    srd(52, 32, 1792 * 1024)
    W2 = 136
    a("s_lshl_b32 s12, s95, 15"); a("s_lshl_b32 s4, s96, 8"); a("s_add_u32 s12, s12, s4"); a("s_add_u32 s13, s12, 4096")
    def w2_loads():
        a("v_lshlrev_b32 v4, 13, v7"); a("v_lshl_add_u32 v4, v1, 4, v4")
        for i in range(8): a(f"buffer_load_dwordx4 v[{W2+4*i}:{W2+4*i+3}], v4, s[52:55], s{12+(i>>2)} offen offset:{(i&3)*1024} nt")
    if not defer: w2_loads()
    a("v_lshrrev_b32 v4, 5, v0"); a("v_mul_u32_u24 v3, 57344, v4"); a("v_bfe_u32 v2, v0, 3, 2"); a("v_lshl_add_u32 v3, v2, 8, v3")
    a("v_lshlrev_b32 v8, 6, v2")
    a("v_and_b32 v2, 7, v0"); a("v_lshl_add_u32 v3, v2, 4, v3"); a("v_lshl_add_u32 v8, v2, 3, v8")
    a("s_lshr_b32 s4, s95, 1"); a("s_lshl_b32 s84, s4, 11"); a("s_and_b32 s4, s95, 1"); a("s_lshl_b32 s4, s4, 7"); a("s_add_u32 s84, s84, s4"); a(f"s_add_u32 s84, s84, {XP + 64*2048:#x}")
    lds_spin(F_P2, 8, sleep=4)
    mpoll("gp", [f"buffer_load_dwordx4 v[{40+4*t}:{43+4*t}], v3, s[56:59], s84 offen offset:{t*1024} sc1" for t in range(2)], [40, 44],
          sleep=opts.get("g_sleep", 8), t40=16)
    stamp(3)
    for t in range(2): unpack4(40 + 4 * t, 60 + 4 * t, 20 + 2 * t)
    for e in range(4): a(f"v_add_f32 v{60+e}, v{60+e}, v{64+e}")
    a("v_cvt_pk_bf16_f32 v40, v60, v61"); a("v_cvt_pk_bf16_f32 v41, v62, v63")
    a("v_mov_b32 v44, v40"); a("v_mov_b32 v45, v41")
    a("v_permlane32_swap_b32 v40, v44"); a("v_permlane32_swap_b32 v41, v45")
    ga, up, tm = 48, 52, 56
    for e in range(2):
        a(f"v_lshlrev_b32 v{ga+2*e}, 16, v{40+e}"); a(f"v_and_b32 v{ga+2*e+1}, s81, v{40+e}")
        a(f"v_lshlrev_b32 v{up+2*e}, 16, v{44+e}"); a(f"v_and_b32 v{up+2*e+1}, s81, v{44+e}")
    for e in range(4): a(f"v_mul_f32 v{tm+e}, s80, v{ga+e}")
    for e in range(4): a(f"v_exp_f32 v{tm+e}, v{tm+e}")
    for e in range(4): a(f"v_add_f32 v{tm+e}, 1.0, v{tm+e}")
    for e in range(4): a(f"v_rcp_f32 v{tm+e}, v{tm+e}")
    for e in range(4): a(f"v_mul_f32 v{tm+e}, v{ga+e}, v{tm+e}")
    for e in range(2): a(f"v_cvt_pk_bf16_f32 v{40+e}, v{tm+2*e}, v{tm+2*e+1}")
    for e in range(2): a(f"v_lshlrev_b32 v{tm+2*e}, 16, v{40+e}"); a(f"v_and_b32 v{tm+2*e+1}, s81, v{40+e}")
    for e in range(4): a(f"v_mul_f32 v{tm+e}, v{tm+e}, v{up+e}")
    for e in range(2): a(f"v_cvt_pk_bf16_f32 v{40+e}, v{tm+2*e}, v{tm+2*e+1}")
    a(f"ds_write_b64 v8, v[40:41] offset:{H_LDS}")
    a("v_lshrrev_b32 v2, 2, v1"); a("v_lshlrev_b32 v2, 6, v2"); a("v_lshl_add_u32 v2, v7, 4, v2")
    a("s_waitcnt lgkmcnt(0)")
    a(f"ds_read_b128 v[72:75], v2 offset:{H_LDS}")
    if defer:
        lds_spin(F_GO, 1, sleep=1)
        w2_loads()
    B2 = 76
    for p in range(4):
        a(f"s_waitcnt vmcnt({6-2*p})")
        r0 = W2 + 8 * p; r1 = r0 + 4
        for x in range(4):
            a(f"v_perm_b32 v{B2+4*(2*x)+p}, v{r1+x}, v{r0+x}, s76")
            a(f"v_perm_b32 v{B2+4*(2*x+1)+p}, v{r1+x}, v{r0+x}, s77")
    a("s_waitcnt lgkmcnt(0)")
    for j in range(8):
        b = B2 + 4 * j
        a(f"v_mfma_f32_16x16x32_bf16 v[{b}:{b+3}], v[72:75], v[{b}:{b+3}], 0")
    for j in range(8): a(f"v_mov_b32 v{8+j}, v{B2+4*j}")
    a("s_branch L_h1_out")
    a("L_h1_none:")
    for j in range(8): a(f"v_mov_b32 v{8+j}, 0")
    a("L_h1_out:")
    a("v_lshlrev_b32 v2, 4, v0")
    a(f"ds_write_b128 v2, v[8:11] offset:{W2R}"); a(f"ds_write_b128 v2, v[12:15] offset:{W2R+1024}")
    a("s_waitcnt lgkmcnt(0)")
    lds_add(F_W2)
    stamp(4)
    stamp_out(3, 5)
    a("s_endpgm")

    a("L_h2:")
    lds_add(F_CNT)
    srd(44, 24, 0x400000)
    a("v_lshlrev_b32 v2, 13, v7"); a("v_lshl_add_u32 v2, v1, 4, v2")
    a("s_lshl_b32 s12, s95, 16"); a("s_lshl_b32 s4, s96, 8"); a("s_add_u32 s12, s12, s4")
    a("s_add_u32 s13, s12, 4096"); a("s_add_u32 s14, s12, 32768"); a("s_add_u32 s15, s12, 36864")
    oplay = opts.get("oplay", 1)
    if oplay == 0:
        a("v_lshlrev_b32 v44, 10, v7"); a("v_lshl_add_u32 v44, v1, 4, v44")
        a("s_lshl_b32 s87, s2, 12"); a(f"s_add_u32 s87, s87, {OP:#x}")
        for jp in range(1, 4): a(f"s_add_u32 s{87+jp}, s87, {256*jp}")
    elif oplay == 1:
        a("v_lshlrev_b32 v44, 16, v7"); a("v_lshl_add_u32 v44, v1, 4, v44")
        a("s_lshl_b32 s87, s96, 18"); a("s_lshl_b32 s4, s95, 8"); a("s_add_u32 s87, s87, s4"); a(f"s_add_u32 s87, s87, {OP:#x}")
        for jp in range(1, 4): a(f"s_add_u32 s{87+jp}, s87, {16384*jp}")
    else:
        a("v_lshlrev_b32 v44, 16, v7"); a("v_lshrrev_b32 v45, 2, v1"); a("v_lshl_add_u32 v44, v45, 12, v44"); a("v_and_b32 v45, 3, v1"); a("v_lshl_add_u32 v44, v45, 4, v44")
        a("s_lshl_b32 s87, s96, 18"); a("s_lshl_b32 s4, s95, 6"); a("s_add_u32 s87, s87, s4"); a(f"s_add_u32 s87, s87, {OP:#x}")
        for jp in range(1, 4): a(f"s_add_u32 s{87+jp}, s87, {16384*jp}")
    def wo_loads():
        for u in range(2):
            for i in range(8):
                r = (8 if u == 0 else 104) + 4 * i
                a(f"buffer_load_dwordx4 v[{r}:{r+3}], v2, s[44:47], s{12+2*u+(i>>2)} offen offset:{(i&3)*1024} nt")
    if not defer: wo_loads()
    a("v_lshrrev_b32 v47, 2, v1"); a("v_lshlrev_b32 v47, 7, v47"); a("v_lshl_add_u32 v47, v7, 4, v47")
    a("v_lshlrev_b32 v46, 4, v0")
    if defer:
        lds_spin(F_GO, 1, sleep=1)
        wo_loads()
    B0, B1 = 72, 8
    for p in range(4):
        a(f"s_waitcnt vmcnt({14-2*p})")
        r0 = 8 + 8 * p; r1 = r0 + 4
        for x in range(4):
            a(f"v_perm_b32 v{B0+4*(2*x)+p}, v{r1+x}, v{r0+x}, s76")
            a(f"v_perm_b32 v{B0+4*(2*x+1)+p}, v{r1+x}, v{r0+x}, s77")
    for p in range(4):
        a(f"s_waitcnt vmcnt({6-2*p})")
        r0 = 104 + 8 * p; r1 = r0 + 4
        for x in range(4):
            a(f"v_perm_b32 v{B1+4*(2*x)+p}, v{r1+x}, v{r0+x}, s76")
            a(f"v_perm_b32 v{B1+4*(2*x+1)+p}, v{r1+x}, v{r0+x}, s77")
    lds_spin(F_W2, 1)
    a(f"ds_read_b128 v[48:51], v46 offset:{W2R}"); a(f"ds_read_b128 v[52:55], v46 offset:{W2R+1024}")
    for jp in range(4): a(f"v_mov_b32 v{106+4*jp}, s42"); a(f"v_mov_b32 v{107+4*jp}, s43")
    stamp(2)
    lds_spin(F_O, 4, sleep=0)
    stamp(3)
    a(f"ds_read_b128 v[64:67], v47 offset:{O_LDS}"); a(f"ds_read_b128 v[68:71], v47 offset:{O_LDS+64}")
    a("s_waitcnt lgkmcnt(1)" if not stamps else "s_waitcnt lgkmcnt(0)")
    for j in range(8):
        d = B0 + 4 * j
        a(f"v_mfma_f32_16x16x32_bf16 v[{d}:{d+3}], v[64:67], v[{d}:{d+3}], 0")
    a("s_waitcnt lgkmcnt(0)")
    for j in range(8):
        d = B0 + 4 * j; b = B1 + 4 * j
        a(f"v_mfma_f32_16x16x32_bf16 v[{d}:{d+3}], v[68:71], v[{b}:{b+3}], v[{d}:{d+3}]")
        if j >= 3 and j % 2 == 1:
            jp = (j - 3) // 2
            a(f"v_add_f32 v{104+4*jp}, v{B0+8*jp}, v{48+2*jp}"); a(f"v_add_f32 v{105+4*jp}, v{B0+8*jp+4}, v{49+2*jp}")
            a(f"buffer_store_dwordx4 v[{104+4*jp}:{107+4*jp}], v44, s[56:59], s{87+jp} offen sc1")
    for jp in (3,):
        a(f"v_add_f32 v{104+4*jp}, v{B0+8*jp}, v{48+2*jp}"); a(f"v_add_f32 v{105+4*jp}, v{B0+8*jp+4}, v{49+2*jp}")
        a(f"buffer_store_dwordx4 v[{104+4*jp}:{107+4*jp}], v44, s[56:59], s{87+jp} offen sc1")
    lds_add(F_PB)
    stamp(4)
    stamp_out(4, 5)
    a("s_endpgm")

    a("L_h3:")
    lds_add(F_CNT)
    srd(52, 34, 4096)
    a("s_bfe_u32 s4, s2, 0x20002"); a("s_lshl_b32 s86, s4, 10")
    a("s_and_b32 s4, s2, 3"); a("s_lshl_b32 s4, s4, 8"); a("s_add_u32 s86, s86, s4")
    a("s_lshl_b32 s4, s96, 6"); a("s_add_u32 s86, s86, s4")
    a("s_bfe_u32 s4, s2, 0x20004"); a("s_lshl_b32 s4, s4, 2"); a("s_add_u32 s86, s86, s4")
    a("v_and_b32 v40, 3, v0"); a("v_lshlrev_b32 v40, 4, v40")
    a("buffer_load_dword v41, v40, s[48:51], s86 offen")
    if opts.get("pretouch", 1):
        a("buffer_load_dword v43, v40, s[52:55], s86 offen")
    if oplay == 0:
        a("v_lshrrev_b32 v45, 2, v0"); a("v_lshl_add_u32 v45, v45, 12, v40")
        a("s_and_b32 s4, s2, 3"); a("s_lshl_b32 s88, s4, 18"); a("s_bfe_u32 s4, s2, 0x20002"); a("s_lshl_b32 s4, s4, 10"); a("s_add_u32 s88, s88, s4")
        a("s_bfe_u32 s4, s2, 0x20004"); a("s_lshl_b32 s4, s4, 8"); a("s_add_u32 s88, s88, s4"); a("s_lshl_b32 s4, s96, 6"); a("s_add_u32 s88, s88, s4"); a(f"s_add_u32 s88, s88, {OP:#x}")
        for t in range(1, 4): a(f"s_add_u32 s{88+t}, s88, {65536*t}")
    else:
        a("s_and_b32 s4, s2, 3"); a("s_lshl_b32 s88, s4, 18"); a("s_bfe_u32 s4, s2, 0x20002"); a("s_lshl_b32 s4, s4, 16"); a("s_add_u32 s88, s88, s4")
        a("s_bfe_u32 s4, s2, 0x20004"); a("s_lshl_b32 s4, s4, 14"); a("s_add_u32 s88, s88, s4"); a(f"s_add_u32 s88, s88, {OP:#x}")
        if oplay == 1:
            a("v_lshrrev_b32 v45, 2, v0"); a("v_lshl_add_u32 v45, v45, 8, v40")
            a("s_lshl_b32 s4, s96, 6"); a("s_add_u32 s88, s88, s4")
            for t in range(1, 4): a(f"s_add_u32 s{88+t}, s88, {4096*t}")
        else:
            a("v_lshlrev_b32 v45, 4, v0")
            a("s_lshl_b32 s4, s96, 12"); a("s_add_u32 s88, s88, s4")
            for t in range(1, 4): a(f"s_add_u32 s{88+t}, s88, {1024*t}")
    a("s_waitcnt vmcnt(0)")
    a("v_lshlrev_b32 v56, 16, v41"); a("v_and_b32 v57, s81, v41")
    TH = opts.get("go_th", 0)
    a("v_and_b32 v2, 31, v0"); a("v_lshlrev_b32 v2, 9, v2")
    a("s_lshl_b32 s8, s95, 14"); a(f"s_add_u32 s8, s8, {AP:#x}")
    lds_spin(F_ISS, 8)
    if TH > 0:
        a("s_mov_b32 s9, 0")
        a("s_mov_b64 exec, 0xffffffff")
        a("L_go:")
        a("buffer_load_dwordx4 v[8:11], v2, s[56:59], s8 offen offset:496 sc1")
        a("s_waitcnt vmcnt(0)")
        a("v_cmp_eq_u64 vcc, s[42:43], v[10:11]")
        a("s_bcnt1_i32_b64 s4, vcc")
        a(f"s_cmp_ge_u32 s4, {TH}"); a("s_cbranch_scc1 L_go_done")
        a(f"s_sleep {opts.get('go_sleep', 3)}")
        a("s_add_u32 s9, s9, 1"); a(f"s_cmp_lt_u32 s9, {BOUND}"); a("s_cbranch_scc1 L_go")
        a("L_go_done:")
        a("s_mov_b64 exec, -1")
    lds_add(F_GO)
    if opts.get("fin_pb", 1): lds_spin(F_PB, 1, sleep=1)
    else: lds_spin(F_O, opts.get("fin_start", 4), sleep=1)
    if opts.get("fin_delay", 12): a(f"s_sleep {opts.get('fin_delay', 12)}")
    stamp(2)
    GF = [120 + 4 * t for t in range(4)]
    mpoll("op", [f"buffer_load_dwordx4 v[{GF[t]}:{GF[t]+3}], v45, s[56:59], s{88+t} offen sc1" for t in range(4)], GF,
          sleep=opts.get("op_sleep", 0), st_cnt=5)
    stamp(3)
    for e in range(2):
        a(f"v_add_f32 v{GF[0]+e}, v{GF[0]+e}, v{GF[1]+e}"); a(f"v_add_f32 v{GF[2]+e}, v{GF[2]+e}, v{GF[3]+e}")
    for e in range(2): a(f"v_add_f32 v{GF[0]+e}, v{GF[0]+e}, v{GF[2]+e}")
    for ror in (4, 8):
        for e in range(2): a(f"v_add_f32_dpp v{GF[0]+e}, v{GF[0]+e}, v{GF[0]+e} row_ror:{ror} {DPPM}")
    for which in (16, 32): xswap("v_add_f32", [GF[0], GF[0] + 1], [GF[1], GF[1] + 1], which)
    a(f"v_add_f32 v56, v56, v{GF[0]}"); a(f"v_add_f32 v57, v57, v{GF[0]+1}")
    a("v_cvt_pk_bf16_f32 v46, v56, v57")
    a("s_mov_b64 exec, 0xf")
    a("buffer_store_dword v46, v40, s[52:55], s86 offen")
    a("s_cmp_lg_u32 s2, 0"); a("s_cbranch_scc1 L_h3_fin")
    a("s_mov_b64 exec, 1")
    a("v_mov_b32 v46, s42"); a("v_mov_b32 v47, s43")
    a("buffer_store_dwordx2 v[46:47], v5, s[56:59], 0 offen sc1")
    a("L_h3_fin:")
    a("s_mov_b64 exec, -1")
    stamp(4, True)
    stamp_out(5, 6)
    a("L_end:")
    a("s_endpgm")
    a("L_code_end:")
    a('.section .rodata,"a"'); a(".p2align 6"); a(f".amdhsa_kernel {NAME}_kernel")
    for l in (".amdhsa_next_free_vgpr 168", ".amdhsa_next_free_sgpr 102", ".amdhsa_accum_offset 168", ".amdhsa_group_segment_fixed_size 0", ".amdhsa_float_denorm_mode_32 3",
              ".amdhsa_kernarg_size 96", ".amdhsa_user_sgpr_count 2", ".amdhsa_user_sgpr_kernarg_segment_ptr 1", ".amdhsa_system_sgpr_workgroup_id_x 1"):
        a("  " + l)
    a(".end_amdhsa_kernel")
    open(out, "w").write(a.finalize())
    if opts.get("cpf", 1) and "_pcoff" not in opts:
        import subprocess
        subprocess.run(["clang", "-x", "assembler", "-target", "amdgcn-amd-amdhsa", "-mcpu=gfx950", "-c", out, "-o", "_g.o"], check=True)
        nm = subprocess.run(["llvm-objdump", "-t", "_g.o"], capture_output=True, text=True).stdout
        sym = {l.split()[-1]: int(l.split()[0], 16) for l in nm.splitlines() if ".text" in l and l[:8] == "00000000"}
        o2 = dict(opts); o2["_pcoff"] = sym["L_pcbase"] & 0xffffff00; o2["_csize"] = sym["L_code_end"]
        assert o2["_pcoff"] > 64 and o2["_csize"] > 64
        gen(out, stamps, o2)

if __name__ == "__main__":
    gen("k_final.s")
```

```python
import sys, struct
from asmlib import Asm
NAME = "parallel_sum__gqa_block_cached__glu_gated_swiglu__decode"

def f2u(x): return struct.unpack("<I", struct.pack("<f", x))[0]

QP = 0x10000
XP = 0x100000
AP = 0x200000
OP = 0x300000
STAMP = 0x8000000
F_Q, F_CNT, F_ISS, F_W2, F_O, F_S1, F_XN, F_ML, F_GO, F_P1, F_P2, F_PB = 0, 4, 8, 12, 16, 20, 24, 28, 32, 36, 40, 44
Q_LDS = 256
ML_LDS = 1280
H_LDS = 1536
O_LDS = 1792
W2R = 2304
OPART = 4352
PS = 272
WSTR = 8 * PS
S1X = OPART + 8 * WSTR
XN_LDS = S1X + 3072
LDS_BYTES = XN_LDS + 4096
BOUND = 2000000

DESIGN = """
Single persistent launch, one 12-wave workgroup per CU (generated by a hand-written python emitter).
 waves 0-7 : flash-decoding split (b, kv-head, 512 keys): K/V streamed straight into VGPRs (nt, windowed),
             QK^T / PV on 16x16x32 bf16 MFMA, true max per wave, log-sum-exp merge across waves and splits.
 waves 8-11: LayerNorm + one [256x64] tile of wq/w1/w3 (MFMA GEMV), q / SwiGLU gathers, wo/w2 tile, final reduce.
 Cross-workgroup hand-offs go through d_ws as self-validating 16-byte granules {payload, tag} written and read
 with agent-scope (sc1) vector accesses; tag = (64-bit word found at d_ws[0]) + 1, stored back at the end, so a
 launch tells its own hand-offs from older contents.  All spins are bounded.  s_sleep is only polling back-off.
"""

def gen(out, stamps=False, opts=None):
    opts = opts or {}
    global XP, AP, OP
    wo_ = opts.get("wsoff", 0)
    XP, AP, OP = 0x100000 + wo_, 0x200000 + wo_, 0x300000 + wo_
    XF = 0x180000 - 64 * 2048 + wo_
    defer = opts.get("defer", True)
    a = Asm()
    hdr = open("cdna_kernels/%s.s.ref" % NAME).read().split("; Override launch")[0]
    a.lines += hdr.strip("\n").split("\n")
    a(f"; @launch grid=(256,1,1) block=(768,1,1) lds={LDS_BYTES}")
    for l in DESIGN.strip("\n").split("\n"): a.lines.append("; " + l)
    a('.amdgcn_target "amdgcn-amd-amdhsa--gfx950"')
    a(".text"); a(f".globl {NAME}_kernel"); a(".p2align 8"); a(f".type {NAME}_kernel,@function"); a(f"{NAME}_kernel:")
    lite = opts.get("lite", 0)
    def stamp(k, force=False):
        if stamps or (lite and (k == 0 or force)): a(f"s_memrealtime s[{60+2*k}:{61+2*k}]")
    def stamp_out(role, n):
        if not (stamps or (lite and role == 5)): return
        a("s_waitcnt lgkmcnt(0)")
        a("s_mov_b64 exec, 1")
        a(f"s_mul_i32 s4, s2, {16*8*8}")
        a(f"s_add_u32 s4, s4, {STAMP + role*64}")
        a("v_mov_b32 v1, s4")
        for k in range(n):
            a(f"v_mov_b32 v2, s{60+2*k}"); a(f"v_mov_b32 v3, s{61+2*k}")
            a(f"buffer_store_dwordx2 v[2:3], v1, s[56:59], 0 offen offset:{8*k}")
        a("s_mov_b64 exec, -1")
    def srd(d, lo, size):
        a(f"s_mov_b32 s{d}, s{lo}"); a(f"s_mov_b32 s{d+1}, s{lo+1}"); a(f"s_mov_b32 s{d+2}, {size:#x}"); a(f"s_mov_b32 s{d+3}, 0x20000")
    uid = [0]
    def lds_spin(off, val, sleep=2):
        uid[0] += 1; L = f"L_spin{uid[0]}"
        a("s_mov_b32 s5, 0")
        a(f"{L}:")
        a(f"ds_read_b32 v4, v5 offset:{off}")
        a("s_waitcnt lgkmcnt(0)")
        a("v_readfirstlane_b32 s4, v4")
        a(f"s_cmp_ge_u32 s4, {val}")
        a(f"s_cbranch_scc1 {L}_done")
        if sleep: a(f"s_sleep {sleep}")
        a("s_add_u32 s5, s5, 1")
        a(f"s_cmp_lt_u32 s5, {BOUND*4}")
        a(f"s_cbranch_scc1 {L}")
        a(f"{L}_done:")
    def lds_add(off):
        a("s_mov_b64 exec, 1")
        a(f"ds_add_u32 v5, v6 offset:{off}")
        a("s_mov_b64 exec, -1")
    def xswap(op, regs, tmps, which):
        for r, t in zip(regs, tmps): a(f"v_mov_b32 v{t}, v{r}")
        for r, t in zip(regs, tmps): a(f"v_permlane{which}_swap_b32 v{r}, v{t}")
        for r, t in zip(regs, tmps): a(f"{op} v{r}, v{r}, v{t}")
    def xreduce(op, r, t):
        xswap(op, [r], [t], 16); xswap(op, [r], [t], 32)
    DPPM = "row_mask:0xf bank_mask:0xf"
    def bf16r(r):
        a(f"v_cvt_pk_bf16_f32 v{r}, v{r}, v{r}"); a(f"v_lshlrev_b32 v{r}, 16, v{r}")
    def tag_wait():
        a("s_waitcnt lgkmcnt(0)")
        a("s_add_u32 s42, s40, 1"); a("s_addc_u32 s43, s41, 0"); a("s_and_b32 s75, s43, 0xff")
    MASKS = [16 + 2 * t for t in range(12)] + [84 + 2 * t for t in range(4)]
    def mpoll(name, loads, regs, sleep=0, st_cnt=None, t40=None):
        n = len(loads)
        a("s_mov_b32 s9, 0")
        for t in range(n): a(loads[t])
        a(f"L_{name}:")
        a("s_waitcnt vmcnt(0)")
        for t in range(n):
            m = MASKS[t]
            if t40 is None:
                a(f"v_cmp_ne_u64 s[{m}:{m+1}], v[{regs[t]+2}:{regs[t]+3}], s[42:43]")
            else:
                a(f"v_and_b32 v{t40+t}, 0xff, v{regs[t]+2}")
                a(f"v_cmp_ne_u32 s[{m}:{m+1}], s42, v{regs[t]+3}")
                a(f"v_cmp_ne_u32 vcc, s75, v{t40+t}")
                a(f"s_or_b64 s[{m}:{m+1}], s[{m}:{m+1}], vcc")
        if n == 1: a(f"s_mov_b64 s[6:7], s[{MASKS[0]}:{MASKS[0]+1}]")
        else: a(f"s_or_b64 s[6:7], s[{MASKS[0]}:{MASKS[0]+1}], s[{MASKS[1]}:{MASKS[1]+1}]")
        for t in range(2, n): a(f"s_or_b64 s[6:7], s[6:7], s[{MASKS[t]}:{MASKS[t]+1}]")
        a("s_cmp_eq_u64 s[6:7], 0"); a(f"s_cbranch_scc1 L_{name}_done")
        a("s_add_u32 s9, s9, 1"); a(f"s_cmp_ge_u32 s9, {BOUND}"); a(f"s_cbranch_scc1 L_{name}_done")
        if sleep: a(f"s_sleep {sleep}")
        for t in range(n):
            m = MASKS[t]
            a(f"s_mov_b64 exec, s[{m}:{m+1}]")
            a(f"s_cbranch_execz L_{name}_sk{t}")
            a(loads[t])
            a(f"L_{name}_sk{t}:")
        a("s_mov_b64 exec, -1")
        a(f"s_branch L_{name}")
        a(f"L_{name}_done:")
        if stamps and st_cnt is not None:
            a("s_waitcnt lgkmcnt(0)")
            a(f"s_mul_i32 s4, s9, 100"); a(f"s_add_u32 s{60+2*st_cnt}, s60, s4"); a(f"s_addc_u32 s{61+2*st_cnt}, s61, 0")

    def ppoll(name, loads, regs, sleep=1, many=64):
        n = len(loads)
        a("s_mov_b32 s9, 0")
        a("s_not_b32 s4, s42")
        for t in range(n): a(f"v_mov_b32 v{regs[t]+2}, s4")
        a("s_mov_b32 exec_lo, 0x80000000"); a("s_mov_b32 exec_hi, 0x80000000")
        for t in range(n): a(loads[t])
        a("s_mov_b64 exec, -1")
        a(f"L_{name}:")
        a("s_waitcnt vmcnt(0)")
        for t in range(n):
            m = MASKS[t]
            a(f"v_cmp_ne_u64 s[{m}:{m+1}], v[{regs[t]+2}:{regs[t]+3}], s[42:43]")
        a(f"s_bcnt1_i32_b64 s5, s[{MASKS[0]}:{MASKS[0]+1}]")
        for t in range(1, n):
            a(f"s_bcnt1_i32_b64 s4, s[{MASKS[t]}:{MASKS[t]+1}]"); a("s_add_u32 s5, s5, s4")
        a("s_cmp_eq_u32 s5, 0"); a(f"s_cbranch_scc1 L_{name}_done")
        a("s_add_u32 s9, s9, 1"); a(f"s_cmp_ge_u32 s9, {BOUND}"); a(f"s_cbranch_scc1 L_{name}_done")
        a(f"s_cmp_le_u32 s5, {many}"); a(f"s_cbranch_scc1 L_{name}_full")
        if sleep: a(f"s_sleep {sleep}")
        for t in range(n):
            m = MASKS[t]
            for h in range(2):
                a(f"s_and_b32 s4, s{m+h}, 0x80000000"); a(f"s_cselect_b32 s{m+h}, s4, s{m+h}")
        a(f"L_{name}_full:")
        for t in range(n):
            m = MASKS[t]
            a(f"s_mov_b64 exec, s[{m}:{m+1}]")
            a(f"s_cbranch_execz L_{name}_sk{t}")
            a(loads[t])
            a(f"L_{name}_sk{t}:")
        a("s_mov_b64 exec, -1")
        a(f"s_branch L_{name}")
        a(f"L_{name}_done:")

    def pack4(r, d, t):
        for x in r: a(f"v_add_u32 v{x}, 0x200, v{x}")
        a(f"v_lshrrev_b32 v{t}, 22, v{r[3]}"); a(f"v_bfe_u32 v{t+1}, v{r[3]}, 12, 10"); a(f"v_bfe_u32 v{t+2}, v{r[3]}, 10, 2")
        a(f"v_and_or_b32 v{d}, v{r[0]}, s73, v{t}"); a(f"v_and_or_b32 v{d+1}, v{r[1]}, s73, v{t+1}")
        a(f"v_lshl_or_b32 v{t+2}, v{t+2}, 8, s75"); a(f"v_and_or_b32 v{d+2}, v{r[2]}, s73, v{t+2}")
    def unpack4(d, o, t):
        a(f"v_lshlrev_b32 v{o+3}, 22, v{d}"); a(f"v_and_b32 v{t}, 0x3ff, v{d+1}"); a(f"v_bfe_u32 v{t+1}, v{d+2}, 8, 2")
        a(f"v_and_b32 v{o}, s73, v{d}"); a(f"v_and_b32 v{o+1}, s73, v{d+1}"); a(f"v_and_b32 v{o+2}, s73, v{d+2}")
        a(f"v_lshl_or_b32 v{o+3}, v{t}, 12, v{o+3}"); a(f"v_lshl_or_b32 v{o+3}, v{t+1}, 10, v{o+3}")
    a("s_cmp_ge_u32 s2, 256"); a("s_cbranch_scc1 L_end")
    stamp(0)
    if opts.get("dbgspan"): a("s_memrealtime s[74:75]")
    a("s_load_dwordx16 s[16:31], s[0:1], 0")
    a("s_load_dwordx8 s[32:39], s[0:1], 64")
    a("v_lshrrev_b32 v1, 6, v0")
    a("v_and_b32 v0, 63, v0")
    a("v_readfirstlane_b32 s3, v1")
    a("v_mov_b32 v5, 0"); a("v_mov_b32 v6, 1")
    a("s_mov_b32 s76, 0x05040100"); a("s_mov_b32 s77, 0x07060302")
    a(f"s_mov_b32 s78, {f2u(1.4426950408889634):#x}")
    a(f"s_mov_b32 s79, {f2u(128 ** -0.5):#x}")
    a(f"s_mov_b32 s80, {f2u(-1.4426950408889634):#x}")
    a("s_mov_b32 s81, 0xffff0000")
    a("v_lshlrev_b32 v2, 2, v0"); a("s_mov_b64 exec, 0xffff"); a("ds_write_b32 v2, v5"); a("s_mov_b64 exec, -1")
    a("v_and_b32 v1, 15, v0")
    a("v_lshrrev_b32 v7, 4, v0")
    a("s_bfe_u32 s92, s2, 0x30003"); a("s_lshr_b32 s93, s2, 6"); a("s_and_b32 s94, s2, 7"); a("s_and_b32 s95, s2, 63"); a("s_lshr_b32 s96, s2, 6")
    a("s_waitcnt lgkmcnt(0)")
    a("s_load_dwordx2 s[40:41], s[38:39], 0")
    srd(56, 38, 0x10000000)
    a("s_cmp_ge_u32 s3, 8"); a("s_cbranch_scc1 L_helper")

    KR, VR, QB, PR = 8, 72, 136, 140
    srd(44, 18, 0x2000000); srd(48, 20, 0x2000000)
    pat = opts.get("pat", 3)
    SS, AS, IS = {0: (131072, 16384, 1024), 1: (16384, 131072, 1024), 2: (1024, 131072, 8192), 3: (131072, 1024, 8192),
                  4: (1024, 8192, 65536), 5: (8192, 1024, 65536)}[pat]
    a("s_lshr_b32 s52, s2, 3"); a("s_lshl_b32 s52, s52, 20"); a(f"s_mul_i32 s4, s94, {SS}"); a("s_add_u32 s52, s52, s4")
    a(f"s_mul_i32 s4, s3, {AS}"); a("s_add_u32 s52, s52, s4")
    a("v_lshrrev_b32 v2, 2, v1"); a("v_lshlrev_b32 v2, 8, v2"); a("v_lshl_add_u32 v2, v7, 6, v2")
    a("v_and_b32 v3, 3, v1"); a("v_lshl_add_u32 v2, v3, 4, v2")
    a("v_lshlrev_b32 v3, 4, v0")
    thr = [opts.get("thr", 3)]
    thr2 = opts.get("thr2", 8)
    QW = opts.get("qw", 8)
    nld = [0]
    def ld(kind, i):
        if kind == "V" and i >= QW: thr[0] = thr2
        if nld[0] >= thr[0]: a(f"s_waitcnt vmcnt({thr[0]-1})")
        nld[0] += 1
        a(f"s_add_u32 s53, s52, {i*IS}")
        if kind == "K": a(f"buffer_load_dwordx4 v[{KR+4*i}:{KR+4*i+3}], v2, s[44:47], s53 offen nt")
        else: a(f"buffer_load_dwordx4 v[{VR+4*i}:{VR+4*i+3}], v3, s[48:51], s53 offen nt")
        n_ = i + (16 if kind == "V" else 0) + 1
        if n_ == opts.get("p1", 13): lds_add(F_P1)
        if n_ == opts.get("p2", 22): lds_add(F_P2)
    for i in range(16):
        if i == thr[0]:
            a("s_barrier")
            if opts.get("prof"): stamp(5)
        ld("K", i)
        if opts.get("prof") and i == 7: stamp(6)
    if opts.get("prof"): stamp(7)
    for i in range(QW): ld("V", i)
    stamp(1)
    tag_wait()
    lds_spin(F_Q, 1)
    stamp(2)
    a(f"ds_read_b128 v[{QB}:{QB+3}], v2 offset:{Q_LDS}")
    vnext = [QW]
    def nextv():
        if vnext[0] < 16:
            ld("V", vnext[0]); vnext[0] += 1
            if vnext[0] == opts.get("isspt", 16): lds_add(F_ISS)
    nextv()
    if QW + 1 < thr2: a(f"s_waitcnt vmcnt({QW+1})")
    a("s_waitcnt lgkmcnt(0)")
    for i in range(16):
        k = KR + 4 * i
        a(f"v_mfma_f32_16x16x32_bf16 v[{k}:{k+3}], v[{k}:{k+3}], v[{QB}:{QB+3}], 0")
    nextv()
    for grp in range(4):
        for c in range(4):
            for i in range(grp * 4, grp * 4 + 4):
                k = KR + 4 * i
                if c == 0: a(f"v_mov_b32_dpp v{k}, v{k} quad_perm:[0,0,0,0] {DPPM}")
                else: a(f"v_add_f32_dpp v{k}, v{k+c}, v{k} quad_perm:[{c},{c},{c},{c}] {DPPM}")
    nextv()
    T = [KR + 4 * i for i in range(16)]
    for step in range(5):
        for i in range(0, 16, 2):
            t0, t1, pk = T[i], T[i + 1], T[i] + 1
            if step == 0: a(f"v_cvt_pk_bf16_f32 v{pk}, v{t0}, v{t1}")
            if step == 1: a(f"v_lshlrev_b32 v{t0}, 16, v{pk}"); a(f"v_and_b32 v{t1}, s81, v{pk}")
            if step == 2: a(f"v_mul_f32 v{t0}, s79, v{t0}"); a(f"v_mul_f32 v{t1}, s79, v{t1}")
            if step == 3: a(f"v_cvt_pk_bf16_f32 v{pk}, v{t0}, v{t1}")
            if step == 4: a(f"v_lshlrev_b32 v{t0}, 16, v{pk}"); a(f"v_and_b32 v{t1}, s81, v{pk}")
    nextv()
    M, Lr, TMP, NM = 148, 149, 150, 151
    a(f"v_max3_f32 v{M}, v{T[0]}, v{T[1]}, v{T[2]}")
    a(f"v_max3_f32 v{TMP}, v{T[3]}, v{T[4]}, v{T[5]}")
    a(f"v_max3_f32 v{M}, v{M}, v{T[6]}, v{T[7]}")
    a(f"v_max3_f32 v{TMP}, v{TMP}, v{T[8]}, v{T[9]}")
    a(f"v_max3_f32 v{M}, v{M}, v{T[10]}, v{T[11]}")
    a(f"v_max3_f32 v{TMP}, v{TMP}, v{T[12]}, v{T[13]}")
    a(f"v_max3_f32 v{M}, v{M}, v{T[14]}, v{T[15]}")
    a(f"v_max_f32 v{M}, v{M}, v{TMP}")
    xreduce("v_max_f32", M, TMP)
    a(f"v_mul_f32 v{NM}, s80, v{M}")
    for i in range(16): a(f"v_fma_f32 v{T[i]}, v{T[i]}, s78, v{NM}")
    for i in range(16): a(f"v_exp_f32 v{T[i]}, v{T[i]}")
    nextv()
    for k in range(8): a(f"v_cvt_pk_bf16_f32 v{PR+k}, v{T[2*k]}, v{T[2*k+1]}")
    a(f"v_add_f32 v{Lr}, v{T[0]}, v{T[1]}"); a(f"v_add_f32 v{TMP}, v{T[2]}, v{T[3]}")
    for i in range(4, 16, 2):
        a(f"v_add_f32 v{Lr}, v{Lr}, v{T[i]}"); a(f"v_add_f32 v{TMP}, v{TMP}, v{T[i+1]}")
    a(f"v_add_f32 v{Lr}, v{Lr}, v{TMP}")
    xreduce("v_add_f32", Lr, TMP)
    a(f"s_mul_i32 s4, s3, {WSTR}")
    a(f"v_lshl_add_u32 v152, v0, 2, s4")
    a("v_lshrrev_b32 v153, 2, v0"); a("v_lshlrev_b32 v153, 6, v153"); a("s_lshl_b32 s4, s3, 3"); a("v_add_u32 v153, s4, v153")
    a("s_mov_b64 exec, 0x1111")
    a(f"ds_write_b64 v153, v[{M}:{M+1}] offset:{ML_LDS}")
    a("s_waitcnt lgkmcnt(0)")
    a("s_mov_b64 exec, 1")
    a(f"ds_add_u32 v5, v6 offset:{F_ML}")
    a("s_mov_b64 exec, -1")
    stamp(3)
    nextv()
    DO = 40
    BOs = (8, VR)
    def vwait(i):
        outstanding_after = vnext[0] - 1 - i
        if outstanding_after < thr[0]: a(f"s_waitcnt vmcnt({outstanding_after})")
    def perms(u, p):
        BO = BOs[u]
        i = 8 * u + 2 * p
        vwait(i + 1)
        r0, r1 = VR + 4 * i, VR + 4 * (i + 1)
        for x in range(4):
            a(f"v_perm_b32 v{BO+4*(2*x)+p}, v{r1+x}, v{r0+x}, s76")
            a(f"v_perm_b32 v{BO+4*(2*x+1)+p}, v{r1+x}, v{r0+x}, s77")
    def mfmas(u):
        for j in range(8):
            d = DO + 4 * j; b = BOs[u] + 4 * j
            c = "0" if u == 0 else f"v[{d}:{d+3}]"
            a(f"v_mfma_f32_16x16x32_bf16 v[{d}:{d+3}], v[{PR+4*u}:{PR+4*u+3}], v[{b}:{b+3}], {c}")
    nextv(); nextv()
    while vnext[0] < 16: nextv()
    for p in range(4): perms(0, p)
    mfmas(0)
    a("v_and_b32 v154, 31, v0")
    a("v_lshrrev_b32 v155, 5, v0")
    a("s_cmp_ge_u32 s3, 4"); a("s_cbranch_scc1 L_pre_hi")
    a(f"v_and_b32 v156, 3, v154"); a(f"v_mul_u32_u24 v156, {2*PS}, v156")
    a("v_lshrrev_b32 v157, 2, v154"); a("v_lshl_add_u32 v157, v155, 3, v157"); a("s_lshl_b32 s4, s3, 4"); a("v_add_u32 v157, s4, v157")
    a("v_lshl_add_u32 v156, v157, 2, v156")
    a("s_lshl_b32 s4, s3, 6"); a("v_mov_b32 v157, s4")
    a("v_lshlrev_b32 v158, 13, v155"); a("v_lshl_add_u32 v158, v154, 3, v158")
    a("s_lshl_b32 s4, s92, 2"); a("s_add_u32 s4, s4, s3"); a("s_lshl_b32 s8, s4, 14")
    a("s_lshl_b32 s4, s93, 11"); a("s_add_u32 s8, s8, s4")
    a("s_lshl_b32 s4, s94, 8"); a("s_add_u32 s8, s8, s4"); a(f"s_add_u32 s8, s8, {AP:#x}")
    a("v_mov_b32 v163, s42")
    a("s_branch L_pre_done")
    a("L_pre_hi:")
    a("v_and_b32 v159, 3, v0"); a("v_lshl_add_u32 v159, v7, 2, v159")
    a("v_bfe_u32 v158, v0, 2, 2"); a("v_lshlrev_b32 v158, 8, v158"); a("v_lshl_add_u32 v158, v159, 4, v158")
    a("s_lshl_b32 s8, s95, 13"); a("s_sub_u32 s4, s3, 4"); a("s_lshl_b32 s10, s4, 11"); a("s_add_u32 s8, s8, s10"); a(f"s_add_u32 s8, s8, {AP:#x}")
    a("s_lshl_b32 s4, s4, 7"); a("v_lshl_add_u32 v156, v159, 3, s4")
    a("L_pre_done:")
    for p in range(4): perms(1, p)
    mfmas(1)
    stamp(4)
    for j in range(8):
        a(f"ds_write_b32 v152, v{DO+4*j} offset:{OPART + j*PS}")
    a("s_waitcnt lgkmcnt(0)")
    lds_add(F_CNT)
    a("s_cmp_ge_u32 s3, 4"); a("s_cbranch_scc1 L_poller")
    lds_spin(F_ML, 8, sleep=0)
    for q in range(4): a(f"ds_read_b128 v[{16+4*q}:{19+4*q}], v157 offset:{ML_LDS + 16*q}")
    a("s_waitcnt lgkmcnt(0)")
    ms = [16 + 2 * w for w in range(8)]
    a(f"v_max3_f32 v48, v{ms[0]}, v{ms[1]}, v{ms[2]}"); a(f"v_max3_f32 v49, v{ms[3]}, v{ms[4]}, v{ms[5]}")
    a(f"v_max3_f32 v48, v48, v{ms[6]}, v{ms[7]}"); a("v_max_f32 v48, v48, v49")
    a("v_mul_f32 v49, s80, v48")
    for w in range(8): a(f"v_fma_f32 v{ms[w]}, v{ms[w]}, s78, v49")
    for w in range(8): a(f"v_exp_f32 v{ms[w]}, v{ms[w]}")
    a(f"v_mul_f32 v50, v{ms[0]}, v{ms[0]+1}")
    for w in range(1, 8): a(f"v_fmac_f32 v50, v{ms[w]}, v{ms[w]+1}")
    a("v_rcp_f32 v53, v50"); a("v_log_f32 v54, v50")
    for w in range(8): a(f"v_mul_f32 v{ms[w]}, v{ms[w]}, v53")
    a("v_sub_f32 v162, v54, v49")
    a("v_add_u32 v162, 0x80, v162"); a("v_and_b32 v162, 0xffffff00, v162"); a("v_or_b32 v162, s75, v162")
    lds_spin(F_CNT, 11, sleep=0)
    if not opts.get("prof"): stamp(5)
    for w in range(8):
        a(f"ds_read_b32 v{32+2*w}, v156 offset:{OPART + w*WSTR}")
        a(f"ds_read_b32 v{33+2*w}, v156 offset:{OPART + w*WSTR + PS}")
    if stamps: a("s_waitcnt lgkmcnt(0)")
    for w in range(8):
        if w % 2 == 0: a(f"s_waitcnt lgkmcnt({12 - 2*w if 12 - 2*w > 0 else 0})")
        if w < 2:
            a(f"v_mul_f32 v{51+2*w}, v{ms[w]}, v{32+2*w}"); a(f"v_mul_f32 v{52+2*w}, v{ms[w]}, v{33+2*w}")
        else:
            a(f"v_fmac_f32 v{51+2*(w&1)}, v{ms[w]}, v{32+2*w}"); a(f"v_fmac_f32 v{52+2*(w&1)}, v{ms[w]}, v{33+2*w}")
    a("v_add_f32 v51, v51, v53"); a("v_add_f32 v52, v52, v54")
    a("v_cvt_pk_bf16_f32 v160, v51, v52")
    a(f"v_mov_b32_dpp v161, v160 quad_perm:[1,1,3,3] {DPPM}")
    a("s_mov_b32 exec_lo, 0x55555555"); a("s_mov_b32 exec_hi, 0x55555555")
    a("buffer_store_dwordx4 v[160:163], v158, s[56:59], s8 offen sc1")
    a("s_mov_b64 exec, -1")
    if not opts.get("prof"): stamp(6)
    if stamps:
        a("s_cmp_eq_u32 s3, 0"); a("s_cbranch_scc0 L_end")
        stamp_out(0, 8)
    a("s_endpgm")
    a("L_poller:")
    G2 = [8, 12]
    aploads = [f"buffer_load_dwordx4 v[{G2[t]}:{G2[t]+3}], v158, s[56:59], s8 offen offset:{t*1024} sc1" for t in range(2)]
    mpoll("ap", aploads, G2, sleep=opts.get("ap_sleep", 1), t40=16)
    stamp(5)
    for t in range(2): a(f"v_and_b32 v{G2[t]+2}, 0xffffff00, v{G2[t]+2}")
    a("v_max_f32 v24, v10, v14")
    U8 = [32 + k for k in range(8)]
    def unp(t, e):
        a(f"v_lshlrev_b32 v{U8[4*t+2*e]}, 16, v{G2[t]+e}"); a(f"v_and_b32 v{U8[4*t+2*e+1]}, s81, v{G2[t]+e}")
    unp(0, 0)
    a(f"v_max_f32_dpp v24, v24, v24 row_ror:4 {DPPM}")
    unp(0, 1)
    a(f"v_max_f32_dpp v24, v24, v24 row_ror:8 {DPPM}")
    unp(1, 0)
    for t in range(2): a(f"v_sub_f32 v{G2[t]+2}, v{G2[t]+2}, v24")
    for t in range(2): a(f"v_exp_f32 v{G2[t]+2}, v{G2[t]+2}")
    unp(1, 1)
    a("v_add_f32 v26, v10, v14")
    for k in range(4): a(f"v_mul_f32 v{27+k}, v10, v{U8[k]}")
    for k in range(4): a(f"v_fmac_f32 v{27+k}, v14, v{U8[4+k]}")
    for ror in (4, 8):
        for r in (26, 27, 28, 29, 30): a(f"v_add_f32_dpp v{r}, v{r}, v{r} row_ror:{ror} {DPPM}")
    a("v_rcp_f32 v26, v26")
    for k in range(4): a(f"v_mul_f32 v{27+k}, v{27+k}, v26")
    a("v_cvt_pk_bf16_f32 v32, v27, v28"); a("v_cvt_pk_bf16_f32 v33, v29, v30")
    a(f"ds_write_b64 v156, v[32:33] offset:{O_LDS}")
    a("s_waitcnt lgkmcnt(0)")
    lds_add(F_O)
    if not opts.get("prof"): stamp(6)
    if stamps:
        a("s_cmp_eq_u32 s3, 7"); a("s_cbranch_scc0 L_end")
        stamp_out(1, 8)
    a("s_endpgm")

    a("L_helper:")
    a("s_barrier")
    a("s_setprio 3")
    a("s_mov_b32 s73, 0xfffffc00")
    if opts.get("cpf", 1):
        a("s_cmp_lg_u32 s3, 11"); a("s_cbranch_scc1 L_nocpf")
        a("s_getpc_b64 s[100:101]")
        a("L_pcbase:")
        a("s_and_b32 s100, s100, 0xffffff00")
        a(f"s_sub_u32 s100, s100, {opts.get('_pcoff', 0x1000):#x}"); a("s_subb_u32 s101, s101, 0")
        a("s_lshr_b32 s4, s2, 3"); a("s_and_b32 s4, s4, 7"); a("s_lshl_b32 s4, s4, 12")
        a("v_lshl_add_u32 v2, v0, 6, s4")
        a(f"v_cmp_gt_u32 vcc, {opts.get('_csize', 0x1000):#x}, v2")
        a("s_and_saveexec_b64 s[6:7], vcc")
        a("s_cbranch_execz L_cpf_x")
        a("global_load_dword v160, v2, s[100:101]")
        a("L_cpf_x:")
        a("s_mov_b64 exec, -1")
        a("L_nocpf:")
    srd(48, 16, 4096)
    a("s_sub_u32 s10, s3, 8")
    XS, XO, WT, BT, ACC = 8, 24, 40, 104, 120
    a("s_cmp_ge_u32 s2, 240"); a("s_cbranch_scc1 L_s1_skip")
    a("s_lshr_b32 s97, s2, 4"); a("s_lshl_b32 s97, s97, 3"); a("s_add_u32 s97, s97, s94"); a("s_bfe_u32 s83, s2, 0x10003")
    a("s_mov_b32 s44, s22"); a("s_mov_b32 s45, s23"); a("s_mov_b32 s46, 0x400000"); a("s_mov_b32 s98, 8192"); a("s_lshl_b32 s11, s97, 7")
    a("s_cmp_lt_u32 s2, 128"); a("s_cbranch_scc1 L_s1_sel")
    a("s_mov_b32 s44, s28"); a("s_mov_b32 s45, s29"); a(f"s_mov_b32 s46, {512*3584:#x}"); a("s_mov_b32 s98, 3584"); a("s_sub_u32 s4, s97, 64"); a("s_lshl_b32 s11, s4, 7")
    a("s_cmp_lt_u32 s97, 92"); a("s_cbranch_scc1 L_s1_sel")
    a("s_mov_b32 s44, s30"); a("s_mov_b32 s45, s31"); a("s_sub_u32 s4, s97, 92"); a("s_lshl_b32 s11, s4, 7")
    a("L_s1_sel:")
    a("s_mov_b32 s47, 0x20000")
    a("v_lshrrev_b32 v2, 2, v1"); a("v_lshlrev_b32 v2, 10, v2")
    a("s_lshl_b32 s82, s83, 2"); a("s_add_u32 s82, s82, s10")
    a("s_cmp_lg_u32 s10, 0"); a("s_cbranch_scc1 L_s1_nox")
    a("v_and_b32 v34, 3, v0"); a("v_lshl_add_u32 v34, v7, 2, v34"); a("v_lshl_add_u32 v34, v34, 6, v2")
    for q in range(4): a(f"buffer_load_dwordx4 v[{XS+4*q}:{XS+4*q+3}], v34, s[48:51], 0 offen offset:{16*q}")
    a("L_s1_nox:")
    a("s_lshl_b32 s4, s98, 3"); a("v_mul_lo_u32 v3, v7, s4"); a("v_lshl_add_u32 v3, v1, 3, v3")
    a("s_lshl_b32 s4, s98, 6"); a("s_mul_i32 s8, s82, s4"); a("s_add_u32 s8, s8, s11")
    a("s_mul_i32 s99, s98, 25")
    for su in range(2):
        for i in range(8):
            r = WT + (su * 8 + i) * 2
            a(f"buffer_load_dwordx2 v[{r}:{r+1}], v3, s[44:47], s8 offen nt")
            if not (su == 1 and i == 7): a(f"s_add_u32 s8, s8, s{98 if i < 7 else 99}")
    a("v_lshl_add_u32 v35, v7, 4, v2"); a("s_lshl_b32 s4, s82, 7"); a("v_add_u32 v35, s4, v35")
    a("s_cmp_lg_u32 s10, 0"); a("s_cbranch_scc1 L_s1_wxn")
    U = 104
    U2 = 72
    a(f"s_waitcnt vmcnt(16)")
    for k in range(16):
        a(f"v_lshlrev_b32 v{U+2*k}, 16, v{XS+k}"); a(f"v_and_b32 v{U+2*k+1}, s81, v{XS+k}")
    S0, S1, S2, S3, TT = 24, 25, 26, 27, 28
    for ci, sreg in enumerate((S0, S1, S2, S3)):
        a(f"v_add_f32 v{sreg}, v{U+ci}, v{U+4+ci}")
    for k in range(8, 32):
        sreg = (S0, S1, S2, S3)[k & 3]
        a(f"v_add_f32 v{sreg}, v{sreg}, v{U+k}")
    a(f"v_add_f32 v{S0}, v{S0}, v{S1}"); a(f"v_add_f32 v{S2}, v{S2}, v{S3}"); a(f"v_add_f32 v{S0}, v{S0}, v{S2}")
    def lred(r):
        a(f"v_add_f32_dpp v{r}, v{r}, v{r} quad_perm:[1,0,3,2] {DPPM}")
        a(f"v_add_f32_dpp v{r}, v{r}, v{r} quad_perm:[2,3,0,1] {DPPM}")
        xreduce("v_add_f32", r, TT)
    lred(S0)
    MEAN = 29
    a(f"v_mul_f32 v{MEAN}, {f2u(1.0/512):#x}, v{S0}")
    for k in range(32): a(f"v_sub_f32 v{U2+k}, v{U+k}, v{MEAN}")
    for ci, sreg in enumerate((S0, S1, S2, S3)): a(f"v_mul_f32 v{sreg}, v{U2+ci}, v{U2+ci}")
    for k in range(4, 32):
        sreg = (S0, S1, S2, S3)[k & 3]
        a(f"v_fmac_f32 v{sreg}, v{U2+k}, v{U2+k}")
    a(f"v_add_f32 v{S0}, v{S0}, v{S1}"); a(f"v_add_f32 v{S2}, v{S2}, v{S3}"); a(f"v_add_f32 v{S0}, v{S0}, v{S2}")
    lred(S0)
    a(f"v_mul_f32 v{S0}, {f2u(1.0/512):#x}, v{S0}")
    bf16r(S0); bf16r(MEAN)
    a(f"v_add_f32 v{S0}, {f2u(1e-5):#x}, v{S0}")
    bf16r(S0)
    a(f"v_sqrt_f32 v{S0}, v{S0}")
    bf16r(S0)
    RS = 30
    a(f"v_rcp_f32 v{RS}, v{S0}")
    for k in range(32): a(f"v_sub_f32 v{U+k}, v{U+k}, v{MEAN}")
    for k in range(16): a(f"v_cvt_pk_bf16_f32 v{XS+k}, v{U+2*k}, v{U+2*k+1}")
    for k in range(16): a(f"v_lshlrev_b32 v{U+2*k}, 16, v{XS+k}"); a(f"v_and_b32 v{U+2*k+1}, s81, v{XS+k}")
    for k in range(32): a(f"v_mul_f32 v{U+k}, v{U+k}, v{RS}")
    for k in range(16): a(f"v_cvt_pk_bf16_f32 v{XS+k}, v{U+2*k}, v{U+2*k+1}")
    for q in range(4): a(f"ds_write_b128 v34, v[{XS+4*q}:{XS+4*q+3}] offset:{XN_LDS + 16*q}")
    a("s_waitcnt lgkmcnt(0)")
    lds_add(F_XN)
    a("s_branch L_s1_xn")
    a("L_s1_wxn:")
    lds_spin(F_XN, 1, sleep=1)
    a("L_s1_xn:")
    for su in range(2): a(f"ds_read_b128 v[{XO+4*su}:{XO+4*su+3}], v35 offset:{XN_LDS + 64*su}")
    a("s_waitcnt lgkmcnt(0)")
    for su in range(2):
        bt = BT
        a(f"s_waitcnt vmcnt({(1 - su) * 8})")
        for p in range(4):
            r0 = WT + (su * 8 + 2 * p) * 2; r1 = r0 + 2
            for y in range(2):
                a(f"v_perm_b32 v{bt+4*(2*y)+p}, v{r1+y}, v{r0+y}, s76")
                a(f"v_perm_b32 v{bt+4*(2*y+1)+p}, v{r1+y}, v{r0+y}, s77")
        for j in range(4):
            d = ACC + 4 * j
            c = "0" if su == 0 else f"v[{d}:{d+3}]"
            a(f"v_mfma_f32_16x16x32_bf16 v[{d}:{d+3}], v[{XO+4*su}:{XO+4*su+3}], v[{bt+4*j}:{bt+4*j+3}], {c}")
    a("v_lshlrev_b32 v2, 4, v0")
    for j in range(4): a(f"v_mov_b32 v{8+j}, v{ACC+4*j}")
    a("s_cmp_eq_u32 s10, 0"); a("s_cbranch_scc1 L_s1_red")
    a("s_lshl_b32 s4, s10, 10"); a("v_add_u32 v2, s4, v2")
    a(f"ds_write_b128 v2, v[8:11] offset:{S1X - 1024}")
    a("s_waitcnt lgkmcnt(0)")
    lds_add(F_S1)
    a("s_branch L_s1_done")
    a("L_s1_red:")
    tag_wait()
    a("v_mov_b32 v26, s42"); a("v_mov_b32 v27, s43"); a("v_mov_b32 v30, s42"); a("v_mov_b32 v31, s43")
    a("s_lshl_b32 s12, s97, 12"); a("s_lshl_b32 s4, s83, 11"); a("s_add_u32 s12, s12, s4"); a(f"s_add_u32 s12, s12, {XP:#x}")
    a("s_lshl_b32 s13, s97, 11"); a("s_lshl_b32 s4, s83, 10"); a("s_add_u32 s13, s13, s4"); a(f"s_add_u32 s13, s13, {XF:#x}")
    lds_spin(F_S1, 3, sleep=0)
    for q in range(3): a(f"ds_read_b128 v[{12+4*q}:{15+4*q}], v2 offset:{S1X + 1024*q}")
    a("s_waitcnt lgkmcnt(0)")
    for j in range(4): a(f"v_add_f32 v{8+j}, v{8+j}, v{12+j}"); a(f"v_add_f32 v{16+j}, v{16+j}, v{20+j}")
    a("s_cmp_ge_u32 s97, 64"); a("s_cbranch_scc1 L_s1_ffn")
    a("v_add_f32 v24, v8, v16"); a("v_add_f32 v25, v9, v17"); a("v_add_f32 v28, v10, v18"); a("v_add_f32 v29, v11, v19")
    a("buffer_store_dwordx4 v[24:27], v2, s[56:59], s12 offen sc1")
    a("buffer_store_dwordx4 v[28:31], v2, s[56:59], s12 offen offset:1024 sc1")
    a("s_branch L_s1_done")
    a("L_s1_ffn:")
    for j in range(4): a(f"v_add_f32 v{8+j}, v{8+j}, v{16+j}")
    a("v_mov_b32 v27, s42")
    pack4([8, 9, 10, 11], 24, 12)
    a("buffer_store_dwordx4 v[24:27], v2, s[56:59], s13 offen sc1")
    a("s_branch L_s1_done")
    a("L_s1_skip:")
    a("L_s1_done:")
    stamp(1)
    tag_wait()
    a("s_cmp_eq_u32 s3, 9"); a("s_cbranch_scc1 L_h1")
    a("s_cmp_eq_u32 s3, 10"); a("s_cbranch_scc1 L_h2")
    a("s_cmp_eq_u32 s3, 11"); a("s_cbranch_scc1 L_h3")

    a("v_lshlrev_b32 v3, 12, v7"); a("v_lshl_add_u32 v3, v1, 4, v3")
    a("s_lshl_b32 s12, s92, 15"); a("s_lshl_b32 s4, s93, 8"); a("s_add_u32 s12, s12, s4"); a(f"s_add_u32 s12, s12, {XP:#x}"); a("s_add_u32 s13, s12, 16384")
    a("v_lshlrev_b32 v2, 7, v7"); a("v_lshl_add_u32 v2, v1, 3, v2")
    G = [40 + 4 * t for t in range(8)]
    lds_spin(F_P1, 8, sleep=4)
    mpoll("qp", [f"buffer_load_dwordx4 v[{G[t]}:{G[t]+3}], v3, s[56:59], s{12+(t>>2)} offen offset:{(t&3)*1024} sc1" for t in range(8)], G,
          sleep=opts.get("q_sleep", 2), st_cnt=5)
    stamp(3)
    for c in range(2):
        for jp in range(2):
            for e in range(2): a(f"v_add_f32 v{G[4*c+jp]+e}, v{G[4*c+jp]+e}, v{G[4*c+2+jp]+e}")
    for c in range(2):
        for jp in range(2): a(f"v_cvt_pk_bf16_f32 v{8+2*c+jp}, v{G[4*c+jp]}, v{G[4*c+jp]+1}")
    for c in range(2): a(f"ds_write_b64 v2, v[{8+2*c}:{9+2*c}] offset:{Q_LDS + c*512}")
    a("s_waitcnt lgkmcnt(0)")
    lds_add(F_Q)
    stamp(4)
    stamp_out(2, 6)
    a("s_endpgm")

    a("L_h1:")
    lds_add(F_CNT)
    a("s_cmp_ge_u32 s95, 56"); a("s_cbranch_scc1 L_h1_none")
    srd(52, 32, 1792 * 1024)
    W2 = 136
    a("s_lshl_b32 s12, s95, 15"); a("s_lshl_b32 s4, s96, 8"); a("s_add_u32 s12, s12, s4"); a("s_add_u32 s13, s12, 4096")
    def w2_loads():
        a("v_lshlrev_b32 v4, 13, v7"); a("v_lshl_add_u32 v4, v1, 4, v4")
        for i in range(8): a(f"buffer_load_dwordx4 v[{W2+4*i}:{W2+4*i+3}], v4, s[52:55], s{12+(i>>2)} offen offset:{(i&3)*1024} nt")
    if not defer: w2_loads()
    a("v_lshrrev_b32 v4, 5, v0"); a("v_mul_u32_u24 v3, 57344, v4"); a("v_bfe_u32 v2, v0, 3, 2"); a("v_lshl_add_u32 v3, v2, 8, v3")
    a("v_lshlrev_b32 v8, 6, v2")
    a("v_and_b32 v2, 7, v0"); a("v_lshl_add_u32 v3, v2, 4, v3"); a("v_lshl_add_u32 v8, v2, 3, v8")
    a("s_lshr_b32 s4, s95, 1"); a("s_lshl_b32 s84, s4, 11"); a("s_and_b32 s4, s95, 1"); a("s_lshl_b32 s4, s4, 7"); a("s_add_u32 s84, s84, s4"); a(f"s_add_u32 s84, s84, {XF + 64*2048:#x}")
    lds_spin(F_P2, 8, sleep=4)
    mpoll("gp", [f"buffer_load_dwordx4 v[{40+4*t}:{43+4*t}], v3, s[56:59], s84 offen offset:{t*1024} sc1" for t in range(2)], [40, 44],
          sleep=opts.get("g_sleep", 8), t40=16)
    stamp(3)
    for t in range(2): unpack4(40 + 4 * t, 60 + 4 * t, 20 + 2 * t)
    for e in range(4): a(f"v_add_f32 v{60+e}, v{60+e}, v{64+e}")
    a("v_cvt_pk_bf16_f32 v40, v60, v61"); a("v_cvt_pk_bf16_f32 v41, v62, v63")
    a("v_mov_b32 v44, v40"); a("v_mov_b32 v45, v41")
    a("v_permlane32_swap_b32 v40, v44"); a("v_permlane32_swap_b32 v41, v45")
    ga, up, tm = 48, 52, 56
    for e in range(2):
        a(f"v_lshlrev_b32 v{ga+2*e}, 16, v{40+e}"); a(f"v_and_b32 v{ga+2*e+1}, s81, v{40+e}")
        a(f"v_lshlrev_b32 v{up+2*e}, 16, v{44+e}"); a(f"v_and_b32 v{up+2*e+1}, s81, v{44+e}")
    for e in range(4): a(f"v_mul_f32 v{tm+e}, s80, v{ga+e}")
    for e in range(4): a(f"v_exp_f32 v{tm+e}, v{tm+e}")
    for e in range(4): a(f"v_add_f32 v{tm+e}, 1.0, v{tm+e}")
    for e in range(4): a(f"v_rcp_f32 v{tm+e}, v{tm+e}")
    for e in range(4): a(f"v_mul_f32 v{tm+e}, v{ga+e}, v{tm+e}")
    for e in range(2): a(f"v_cvt_pk_bf16_f32 v{40+e}, v{tm+2*e}, v{tm+2*e+1}")
    for e in range(2): a(f"v_lshlrev_b32 v{tm+2*e}, 16, v{40+e}"); a(f"v_and_b32 v{tm+2*e+1}, s81, v{40+e}")
    for e in range(4): a(f"v_mul_f32 v{tm+e}, v{tm+e}, v{up+e}")
    for e in range(2): a(f"v_cvt_pk_bf16_f32 v{40+e}, v{tm+2*e}, v{tm+2*e+1}")
    a(f"ds_write_b64 v8, v[40:41] offset:{H_LDS}")
    a("v_lshrrev_b32 v2, 2, v1"); a("v_lshlrev_b32 v2, 6, v2"); a("v_lshl_add_u32 v2, v7, 4, v2")
    a("s_waitcnt lgkmcnt(0)")
    a(f"ds_read_b128 v[72:75], v2 offset:{H_LDS}")
    if defer:
        lds_spin(F_GO, 1, sleep=1)
        w2_loads()
    B2 = 76
    for p in range(4):
        a(f"s_waitcnt vmcnt({6-2*p})")
        r0 = W2 + 8 * p; r1 = r0 + 4
        for x in range(4):
            a(f"v_perm_b32 v{B2+4*(2*x)+p}, v{r1+x}, v{r0+x}, s76")
            a(f"v_perm_b32 v{B2+4*(2*x+1)+p}, v{r1+x}, v{r0+x}, s77")
    a("s_waitcnt lgkmcnt(0)")
    for j in range(8):
        b = B2 + 4 * j
        a(f"v_mfma_f32_16x16x32_bf16 v[{b}:{b+3}], v[72:75], v[{b}:{b+3}], 0")
    for j in range(8): a(f"v_mov_b32 v{8+j}, v{B2+4*j}")
    a("s_branch L_h1_out")
    a("L_h1_none:")
    for j in range(8): a(f"v_mov_b32 v{8+j}, 0")
    a("L_h1_out:")
    a("v_lshlrev_b32 v2, 4, v0")
    a(f"ds_write_b128 v2, v[8:11] offset:{W2R}"); a(f"ds_write_b128 v2, v[12:15] offset:{W2R+1024}")
    a("s_waitcnt lgkmcnt(0)")
    lds_add(F_W2)
    stamp(4)
    stamp_out(3, 5)
    a("s_endpgm")

    a("L_h2:")
    lds_add(F_CNT)
    srd(44, 24, 0x400000)
    a("v_lshlrev_b32 v2, 13, v7"); a("v_lshl_add_u32 v2, v1, 4, v2")
    a("s_lshl_b32 s12, s95, 16"); a("s_lshl_b32 s4, s96, 8"); a("s_add_u32 s12, s12, s4")
    a("s_add_u32 s13, s12, 4096"); a("s_add_u32 s14, s12, 32768"); a("s_add_u32 s15, s12, 36864")
    oplay = opts.get("oplay", 1)
    if oplay == 0:
        a("v_lshlrev_b32 v44, 10, v7"); a("v_lshl_add_u32 v44, v1, 4, v44")
        a("s_lshl_b32 s87, s2, 12"); a(f"s_add_u32 s87, s87, {OP:#x}")
        for jp in range(1, 4): a(f"s_add_u32 s{87+jp}, s87, {256*jp}")
    elif oplay == 1:
        a("v_lshlrev_b32 v44, 16, v7"); a("v_lshl_add_u32 v44, v1, 4, v44")
        a("s_lshl_b32 s87, s96, 18"); a("s_lshl_b32 s4, s95, 8"); a("s_add_u32 s87, s87, s4"); a(f"s_add_u32 s87, s87, {OP:#x}")
        for jp in range(1, 4): a(f"s_add_u32 s{87+jp}, s87, {16384*jp}")
    else:
        a("v_lshlrev_b32 v44, 16, v7"); a("v_lshrrev_b32 v45, 2, v1"); a("v_lshl_add_u32 v44, v45, 12, v44"); a("v_and_b32 v45, 3, v1"); a("v_lshl_add_u32 v44, v45, 4, v44")
        a("s_lshl_b32 s87, s96, 18"); a("s_lshl_b32 s4, s95, 6"); a("s_add_u32 s87, s87, s4"); a(f"s_add_u32 s87, s87, {OP:#x}")
        for jp in range(1, 4): a(f"s_add_u32 s{87+jp}, s87, {16384*jp}")
    def wo_loads():
        for u in range(2):
            for i in range(8):
                r = (8 if u == 0 else 104) + 4 * i
                a(f"buffer_load_dwordx4 v[{r}:{r+3}], v2, s[44:47], s{12+2*u+(i>>2)} offen offset:{(i&3)*1024} nt")
    if not defer: wo_loads()
    a("v_lshrrev_b32 v47, 2, v1"); a("v_lshlrev_b32 v47, 7, v47"); a("v_lshl_add_u32 v47, v7, 4, v47")
    a("v_lshlrev_b32 v46, 4, v0")
    if defer:
        lds_spin(F_GO, 1, sleep=1)
        wo_loads()
    B0, B1 = 72, 8
    for p in range(4):
        a(f"s_waitcnt vmcnt({14-2*p})")
        r0 = 8 + 8 * p; r1 = r0 + 4
        for x in range(4):
            a(f"v_perm_b32 v{B0+4*(2*x)+p}, v{r1+x}, v{r0+x}, s76")
            a(f"v_perm_b32 v{B0+4*(2*x+1)+p}, v{r1+x}, v{r0+x}, s77")
    for p in range(4):
        a(f"s_waitcnt vmcnt({6-2*p})")
        r0 = 104 + 8 * p; r1 = r0 + 4
        for x in range(4):
            a(f"v_perm_b32 v{B1+4*(2*x)+p}, v{r1+x}, v{r0+x}, s76")
            a(f"v_perm_b32 v{B1+4*(2*x+1)+p}, v{r1+x}, v{r0+x}, s77")
    lds_spin(F_W2, 1)
    a(f"ds_read_b128 v[48:51], v46 offset:{W2R}"); a(f"ds_read_b128 v[52:55], v46 offset:{W2R+1024}")
    for jp in range(4): a(f"v_mov_b32 v{106+4*jp}, s42"); a(f"v_mov_b32 v{107+4*jp}, s43")
    stamp(2)
    lds_spin(F_O, 4, sleep=0)
    stamp(3)
    a(f"ds_read_b128 v[64:67], v47 offset:{O_LDS}"); a(f"ds_read_b128 v[68:71], v47 offset:{O_LDS+64}")
    a("s_waitcnt lgkmcnt(1)" if not stamps else "s_waitcnt lgkmcnt(0)")
    for j in range(8):
        d = B0 + 4 * j
        a(f"v_mfma_f32_16x16x32_bf16 v[{d}:{d+3}], v[64:67], v[{d}:{d+3}], 0")
    a("s_waitcnt lgkmcnt(0)")
    for j in range(8):
        d = B0 + 4 * j; b = B1 + 4 * j
        a(f"v_mfma_f32_16x16x32_bf16 v[{d}:{d+3}], v[68:71], v[{b}:{b+3}], v[{d}:{d+3}]")
        if j >= 3 and j % 2 == 1:
            jp = (j - 3) // 2
            a(f"v_add_f32 v{104+4*jp}, v{B0+8*jp}, v{48+2*jp}"); a(f"v_add_f32 v{105+4*jp}, v{B0+8*jp+4}, v{49+2*jp}")
            a(f"buffer_store_dwordx4 v[{104+4*jp}:{107+4*jp}], v44, s[56:59], s{87+jp} offen sc1")
    for jp in (3,):
        a(f"v_add_f32 v{104+4*jp}, v{B0+8*jp}, v{48+2*jp}"); a(f"v_add_f32 v{105+4*jp}, v{B0+8*jp+4}, v{49+2*jp}")
        a(f"buffer_store_dwordx4 v[{104+4*jp}:{107+4*jp}], v44, s[56:59], s{87+jp} offen sc1")
    lds_add(F_PB)
    stamp(4)
    stamp_out(4, 5)
    a("s_endpgm")

    a("L_h3:")
    lds_add(F_CNT)
    srd(52, 34, 4096)
    a("s_bfe_u32 s4, s2, 0x20002"); a("s_lshl_b32 s86, s4, 10")
    a("s_and_b32 s4, s2, 3"); a("s_lshl_b32 s4, s4, 8"); a("s_add_u32 s86, s86, s4")
    a("s_lshl_b32 s4, s96, 6"); a("s_add_u32 s86, s86, s4")
    a("s_bfe_u32 s4, s2, 0x20004"); a("s_lshl_b32 s4, s4, 2"); a("s_add_u32 s86, s86, s4")
    a("v_and_b32 v40, 3, v0"); a("v_lshlrev_b32 v40, 4, v40")
    a("buffer_load_dword v41, v40, s[48:51], s86 offen")
    if opts.get("pretouch", 1):
        a("buffer_load_dword v43, v40, s[52:55], s86 offen")
    if oplay == 0:
        a("v_lshrrev_b32 v45, 2, v0"); a("v_lshl_add_u32 v45, v45, 12, v40")
        a("s_and_b32 s4, s2, 3"); a("s_lshl_b32 s88, s4, 18"); a("s_bfe_u32 s4, s2, 0x20002"); a("s_lshl_b32 s4, s4, 10"); a("s_add_u32 s88, s88, s4")
        a("s_bfe_u32 s4, s2, 0x20004"); a("s_lshl_b32 s4, s4, 8"); a("s_add_u32 s88, s88, s4"); a("s_lshl_b32 s4, s96, 6"); a("s_add_u32 s88, s88, s4"); a(f"s_add_u32 s88, s88, {OP:#x}")
        for t in range(1, 4): a(f"s_add_u32 s{88+t}, s88, {65536*t}")
    else:
        a("s_and_b32 s4, s2, 3"); a("s_lshl_b32 s88, s4, 18"); a("s_bfe_u32 s4, s2, 0x20002"); a("s_lshl_b32 s4, s4, 16"); a("s_add_u32 s88, s88, s4")
        a("s_bfe_u32 s4, s2, 0x20004"); a("s_lshl_b32 s4, s4, 14"); a("s_add_u32 s88, s88, s4"); a(f"s_add_u32 s88, s88, {OP:#x}")
        if oplay == 1:
            a("v_lshrrev_b32 v45, 2, v0"); a("v_lshl_add_u32 v45, v45, 8, v40")
            a("s_lshl_b32 s4, s96, 6"); a("s_add_u32 s88, s88, s4")
            for t in range(1, 4): a(f"s_add_u32 s{88+t}, s88, {4096*t}")
        else:
            a("v_lshlrev_b32 v45, 4, v0")
            a("s_lshl_b32 s4, s96, 12"); a("s_add_u32 s88, s88, s4")
            for t in range(1, 4): a(f"s_add_u32 s{88+t}, s88, {1024*t}")
    a("s_waitcnt vmcnt(0)")
    a("v_lshlrev_b32 v56, 16, v41"); a("v_and_b32 v57, s81, v41")
    TH = opts.get("go_th", 0)
    a("v_and_b32 v2, 31, v0"); a("v_lshlrev_b32 v2, 9, v2")
    a("s_lshl_b32 s8, s95, 14"); a(f"s_add_u32 s8, s8, {AP:#x}")
    lds_spin(F_ISS, 8)
    if TH > 0:
        a("s_mov_b32 s9, 0")
        a("s_mov_b64 exec, 0xffffffff")
        a("L_go:")
        a("buffer_load_dwordx4 v[8:11], v2, s[56:59], s8 offen offset:496 sc1")
        a("s_waitcnt vmcnt(0)")
        a("v_cmp_eq_u64 vcc, s[42:43], v[10:11]")
        a("s_bcnt1_i32_b64 s4, vcc")
        a(f"s_cmp_ge_u32 s4, {TH}"); a("s_cbranch_scc1 L_go_done")
        a(f"s_sleep {opts.get('go_sleep', 3)}")
        a("s_add_u32 s9, s9, 1"); a(f"s_cmp_lt_u32 s9, {BOUND}"); a("s_cbranch_scc1 L_go")
        a("L_go_done:")
        a("s_mov_b64 exec, -1")
    lds_add(F_GO)
    if opts.get("fin_pb", 1): lds_spin(F_PB, 1, sleep=1)
    else: lds_spin(F_O, opts.get("fin_start", 4), sleep=1)
    if opts.get("fin_delay", 12): a(f"s_sleep {opts.get('fin_delay', 12)}")
    stamp(2)
    GF = [120 + 4 * t for t in range(4)]
    mpoll("op", [f"buffer_load_dwordx4 v[{GF[t]}:{GF[t]+3}], v45, s[56:59], s{88+t} offen sc1" for t in range(4)], GF,
          sleep=opts.get("op_sleep", 0), st_cnt=5)
    stamp(3)
    for e in range(2):
        a(f"v_add_f32 v{GF[0]+e}, v{GF[0]+e}, v{GF[1]+e}"); a(f"v_add_f32 v{GF[2]+e}, v{GF[2]+e}, v{GF[3]+e}")
    for e in range(2): a(f"v_add_f32 v{GF[0]+e}, v{GF[0]+e}, v{GF[2]+e}")
    for ror in (4, 8):
        for e in range(2): a(f"v_add_f32_dpp v{GF[0]+e}, v{GF[0]+e}, v{GF[0]+e} row_ror:{ror} {DPPM}")
    for which in (16, 32): xswap("v_add_f32", [GF[0], GF[0] + 1], [GF[1], GF[1] + 1], which)
    a(f"v_add_f32 v56, v56, v{GF[0]}"); a(f"v_add_f32 v57, v57, v{GF[0]+1}")
    a("v_cvt_pk_bf16_f32 v46, v56, v57")
    a("s_mov_b64 exec, 0xf")
    a("buffer_store_dword v46, v40, s[52:55], s86 offen")
    a("s_cmp_lg_u32 s2, 0"); a("s_cbranch_scc1 L_h3_fin")
    a("s_mov_b64 exec, 1")
    a("v_mov_b32 v46, s42"); a("v_mov_b32 v47, s43")
    a("buffer_store_dwordx2 v[46:47], v5, s[56:59], 0 offen sc1")
    a("L_h3_fin:")
    a("s_mov_b64 exec, -1")
    stamp(4, True)
    stamp_out(5, 6)
    a("L_end:")
    a("s_endpgm")
    a("L_code_end:")
    a('.section .rodata,"a"'); a(".p2align 6"); a(f".amdhsa_kernel {NAME}_kernel")
    for l in (".amdhsa_next_free_vgpr 168", ".amdhsa_next_free_sgpr 102", ".amdhsa_accum_offset 168", ".amdhsa_group_segment_fixed_size 0", ".amdhsa_float_denorm_mode_32 3",
              ".amdhsa_kernarg_size 96", ".amdhsa_user_sgpr_count 2", ".amdhsa_user_sgpr_kernarg_segment_ptr 1", ".amdhsa_system_sgpr_workgroup_id_x 1"):
        a("  " + l)
    a(".end_amdhsa_kernel")
    open(out, "w").write(a.finalize())
    if opts.get("cpf", 1) and "_pcoff" not in opts:
        import subprocess
        subprocess.run(["clang", "-x", "assembler", "-target", "amdgcn-amd-amdhsa", "-mcpu=gfx950", "-c", out, "-o", "_g.o"], check=True)
        nm = subprocess.run(["llvm-objdump", "-t", "_g.o"], capture_output=True, text=True).stdout
        sym = {l.split()[-1]: int(l.split()[0], 16) for l in nm.splitlines() if ".text" in l and l[:8] == "00000000"}
        o2 = dict(opts); o2["_pcoff"] = sym["L_pcbase"] & 0xffffff00; o2["_csize"] = sym["L_code_end"]
        assert o2["_pcoff"] > 64 and o2["_csize"] > 64
        gen(out, stamps, o2)

if __name__ == "__main__":
    gen("k_final.s")
```

```python
import sys, struct
from asmlib import Asm
NAME = "parallel_sum__gqa_block_cached__glu_gated_swiglu__decode"

def f2u(x): return struct.unpack("<I", struct.pack("<f", x))[0]

QP = 0x10000
XP = 0x100000
AP = 0x200000
OP = 0x300000
STAMP = 0x8000000
F_Q, F_CNT, F_ISS, F_W2, F_O, F_S1, F_XN, F_ML, F_GO, F_P1, F_P2, F_PB = 0, 4, 8, 12, 16, 20, 24, 28, 32, 36, 40, 44
Q_LDS = 256
ML_LDS = 1280
H_LDS = 1536
O_LDS = 1792
W2R = 2304
OPART = 4352
PS = 272
WSTR = 8 * PS
S1X = OPART + 8 * WSTR
XN_LDS = S1X + 3072
LDS_BYTES = XN_LDS + 4096
BOUND = 2000000

DESIGN = """
Single persistent launch, one 12-wave workgroup per CU (generated by a hand-written python emitter).
 waves 0-7 : flash-decoding split (b, kv-head, 512 keys): K/V streamed straight into VGPRs (nt, windowed),
             QK^T / PV on 16x16x32 bf16 MFMA, true max per wave, log-sum-exp merge across waves and splits.
 waves 8-11: LayerNorm + one [256x64] tile of wq/w1/w3 (MFMA GEMV), q / SwiGLU gathers, wo/w2 tile, final reduce.
 Cross-workgroup hand-offs go through d_ws as self-validating 16-byte granules {payload, tag} written and read
 with agent-scope (sc1) vector accesses; tag = (64-bit word found at d_ws[0]) + 1, stored back at the end, so a
 launch tells its own hand-offs from older contents.  All spins are bounded.  s_sleep is only polling back-off.
"""

def gen(out, stamps=False, opts=None):
    opts = opts or {}
    global XP, AP, OP
    wo_ = opts.get("wsoff", 0)
    XP, AP, OP = 0x100000 + wo_, 0x200000 + wo_, 0x300000 + wo_
    XF = 0x180000 - 64 * 2048 + wo_
    QF = 0x180000 + wo_
    defer = opts.get("defer", True)
    a = Asm()
    hdr = open("cdna_kernels/%s.s.ref" % NAME).read().split("; Override launch")[0]
    a.lines += hdr.strip("\n").split("\n")
    a(f"; @launch grid=(256,1,1) block=(768,1,1) lds={LDS_BYTES}")
    for l in DESIGN.strip("\n").split("\n"): a.lines.append("; " + l)
    a('.amdgcn_target "amdgcn-amd-amdhsa--gfx950"')
    a(".text"); a(f".globl {NAME}_kernel"); a(".p2align 8"); a(f".type {NAME}_kernel,@function"); a(f"{NAME}_kernel:")
    lite = opts.get("lite", 0)
    def stamp(k, force=False):
        if stamps or (lite and (k == 0 or force)): a(f"s_memrealtime s[{60+2*k}:{61+2*k}]")
    def stamp_out(role, n):
        if not (stamps or (lite and role == 5)): return
        a("s_waitcnt lgkmcnt(0)")
        a("s_mov_b64 exec, 1")
        a(f"s_mul_i32 s4, s2, {16*8*8}")
        a(f"s_add_u32 s4, s4, {STAMP + role*64}")
        a("v_mov_b32 v1, s4")
        for k in range(n):
            a(f"v_mov_b32 v2, s{60+2*k}"); a(f"v_mov_b32 v3, s{61+2*k}")
            a(f"buffer_store_dwordx2 v[2:3], v1, s[56:59], 0 offen offset:{8*k}")
        a("s_mov_b64 exec, -1")
    def srd(d, lo, size):
        a(f"s_mov_b32 s{d}, s{lo}"); a(f"s_mov_b32 s{d+1}, s{lo+1}"); a(f"s_mov_b32 s{d+2}, {size:#x}"); a(f"s_mov_b32 s{d+3}, 0x20000")
    uid = [0]
    def lds_spin(off, val, sleep=2):
        uid[0] += 1; L = f"L_spin{uid[0]}"
        a("s_mov_b32 s5, 0")
        a(f"{L}:")
        a(f"ds_read_b32 v4, v5 offset:{off}")
        a("s_waitcnt lgkmcnt(0)")
        a("v_readfirstlane_b32 s4, v4")
        a(f"s_cmp_ge_u32 s4, {val}")
        a(f"s_cbranch_scc1 {L}_done")
        if sleep: a(f"s_sleep {sleep}")
        a("s_add_u32 s5, s5, 1")
        a(f"s_cmp_lt_u32 s5, {BOUND*4}")
        a(f"s_cbranch_scc1 {L}")
        a(f"{L}_done:")
    def lds_add(off):
        a("s_mov_b64 exec, 1")
        a(f"ds_add_u32 v5, v6 offset:{off}")
        a("s_mov_b64 exec, -1")
    def xswap(op, regs, tmps, which):
        for r, t in zip(regs, tmps): a(f"v_mov_b32 v{t}, v{r}")
        for r, t in zip(regs, tmps): a(f"v_permlane{which}_swap_b32 v{r}, v{t}")
        for r, t in zip(regs, tmps): a(f"{op} v{r}, v{r}, v{t}")
    def xreduce(op, r, t):
        xswap(op, [r], [t], 16); xswap(op, [r], [t], 32)
    DPPM = "row_mask:0xf bank_mask:0xf"
    def bf16r(r):
        a(f"v_cvt_pk_bf16_f32 v{r}, v{r}, v{r}"); a(f"v_lshlrev_b32 v{r}, 16, v{r}")
    def tag_wait():
        a("s_waitcnt lgkmcnt(0)")
        a("s_add_u32 s42, s40, 1"); a("s_addc_u32 s43, s41, 0"); a("s_and_b32 s75, s43, 0xff")
    MASKS = [16 + 2 * t for t in range(12)] + [84 + 2 * t for t in range(4)]
    def mpoll(name, loads, regs, sleep=0, st_cnt=None, t40=None):
        n = len(loads)
        a("s_mov_b32 s9, 0")
        for t in range(n): a(loads[t])
        a(f"L_{name}:")
        a("s_waitcnt vmcnt(0)")
        for t in range(n):
            m = MASKS[t]
            if t40 is None:
                a(f"v_cmp_ne_u64 s[{m}:{m+1}], v[{regs[t]+2}:{regs[t]+3}], s[42:43]")
            else:
                a(f"v_and_b32 v{t40+t}, 0xff, v{regs[t]+2}")
                a(f"v_cmp_ne_u32 s[{m}:{m+1}], s42, v{regs[t]+3}")
                a(f"v_cmp_ne_u32 vcc, s75, v{t40+t}")
                a(f"s_or_b64 s[{m}:{m+1}], s[{m}:{m+1}], vcc")
        if n == 1: a(f"s_mov_b64 s[6:7], s[{MASKS[0]}:{MASKS[0]+1}]")
        else: a(f"s_or_b64 s[6:7], s[{MASKS[0]}:{MASKS[0]+1}], s[{MASKS[1]}:{MASKS[1]+1}]")
        for t in range(2, n): a(f"s_or_b64 s[6:7], s[6:7], s[{MASKS[t]}:{MASKS[t]+1}]")
        a("s_cmp_eq_u64 s[6:7], 0"); a(f"s_cbranch_scc1 L_{name}_done")
        a("s_add_u32 s9, s9, 1"); a(f"s_cmp_ge_u32 s9, {BOUND}"); a(f"s_cbranch_scc1 L_{name}_done")
        if sleep: a(f"s_sleep {sleep}")
        for t in range(n):
            m = MASKS[t]
            a(f"s_mov_b64 exec, s[{m}:{m+1}]")
            a(f"s_cbranch_execz L_{name}_sk{t}")
            a(loads[t])
            a(f"L_{name}_sk{t}:")
        a("s_mov_b64 exec, -1")
        a(f"s_branch L_{name}")
        a(f"L_{name}_done:")
        if stamps and st_cnt is not None:
            a("s_waitcnt lgkmcnt(0)")
            a(f"s_mul_i32 s4, s9, 100"); a(f"s_add_u32 s{60+2*st_cnt}, s60, s4"); a(f"s_addc_u32 s{61+2*st_cnt}, s61, 0")

    def ppoll(name, loads, regs, sleep=1, many=64):
        n = len(loads)
        a("s_mov_b32 s9, 0")
        a("s_not_b32 s4, s42")
        for t in range(n): a(f"v_mov_b32 v{regs[t]+2}, s4")
        a("s_mov_b32 exec_lo, 0x80000000"); a("s_mov_b32 exec_hi, 0x80000000")
        for t in range(n): a(loads[t])
        a("s_mov_b64 exec, -1")
        a(f"L_{name}:")
        a("s_waitcnt vmcnt(0)")
        for t in range(n):
            m = MASKS[t]
            a(f"v_cmp_ne_u64 s[{m}:{m+1}], v[{regs[t]+2}:{regs[t]+3}], s[42:43]")
        a(f"s_bcnt1_i32_b64 s5, s[{MASKS[0]}:{MASKS[0]+1}]")
        for t in range(1, n):
            a(f"s_bcnt1_i32_b64 s4, s[{MASKS[t]}:{MASKS[t]+1}]"); a("s_add_u32 s5, s5, s4")
        a("s_cmp_eq_u32 s5, 0"); a(f"s_cbranch_scc1 L_{name}_done")
        a("s_add_u32 s9, s9, 1"); a(f"s_cmp_ge_u32 s9, {BOUND}"); a(f"s_cbranch_scc1 L_{name}_done")
        a(f"s_cmp_le_u32 s5, {many}"); a(f"s_cbranch_scc1 L_{name}_full")
        if sleep: a(f"s_sleep {sleep}")
        for t in range(n):
            m = MASKS[t]
            for h in range(2):
                a(f"s_and_b32 s4, s{m+h}, 0x80000000"); a(f"s_cselect_b32 s{m+h}, s4, s{m+h}")
        a(f"L_{name}_full:")
        for t in range(n):
            m = MASKS[t]
            a(f"s_mov_b64 exec, s[{m}:{m+1}]")
            a(f"s_cbranch_execz L_{name}_sk{t}")
            a(loads[t])
            a(f"L_{name}_sk{t}:")
        a("s_mov_b64 exec, -1")
        a(f"s_branch L_{name}")
        a(f"L_{name}_done:")

    def pack4(r, d, t):
        for x in r: a(f"v_add_u32 v{x}, 0x200, v{x}")
        a(f"v_lshrrev_b32 v{t}, 22, v{r[3]}"); a(f"v_bfe_u32 v{t+1}, v{r[3]}, 12, 10"); a(f"v_bfe_u32 v{t+2}, v{r[3]}, 10, 2")
        a(f"v_and_or_b32 v{d}, v{r[0]}, s73, v{t}"); a(f"v_and_or_b32 v{d+1}, v{r[1]}, s73, v{t+1}")
        a(f"v_lshl_or_b32 v{t+2}, v{t+2}, 8, s75"); a(f"v_and_or_b32 v{d+2}, v{r[2]}, s73, v{t+2}")
    def unpack4(d, o, t):
        a(f"v_lshlrev_b32 v{o+3}, 22, v{d}"); a(f"v_and_b32 v{t}, 0x3ff, v{d+1}"); a(f"v_bfe_u32 v{t+1}, v{d+2}, 8, 2")
        a(f"v_and_b32 v{o}, s73, v{d}"); a(f"v_and_b32 v{o+1}, s73, v{d+1}"); a(f"v_and_b32 v{o+2}, s73, v{d+2}")
        a(f"v_lshl_or_b32 v{o+3}, v{t}, 12, v{o+3}"); a(f"v_lshl_or_b32 v{o+3}, v{t+1}, 10, v{o+3}")
    a("s_cmp_ge_u32 s2, 256"); a("s_cbranch_scc1 L_end")
    stamp(0)
    if opts.get("dbgspan"): a("s_memrealtime s[74:75]")
    a("s_load_dwordx16 s[16:31], s[0:1], 0")
    a("s_load_dwordx8 s[32:39], s[0:1], 64")
    a("v_lshrrev_b32 v1, 6, v0")
    a("v_and_b32 v0, 63, v0")
    a("v_readfirstlane_b32 s3, v1")
    a("v_mov_b32 v5, 0"); a("v_mov_b32 v6, 1")
    a("s_mov_b32 s76, 0x05040100"); a("s_mov_b32 s77, 0x07060302")
    a(f"s_mov_b32 s78, {f2u(1.4426950408889634):#x}")
    a(f"s_mov_b32 s79, {f2u(128 ** -0.5):#x}")
    a(f"s_mov_b32 s80, {f2u(-1.4426950408889634):#x}")
    a("s_mov_b32 s81, 0xffff0000")
    a("v_lshlrev_b32 v2, 2, v0"); a("s_mov_b64 exec, 0xffff"); a("ds_write_b32 v2, v5"); a("s_mov_b64 exec, -1")
    a("v_and_b32 v1, 15, v0")
    a("v_lshrrev_b32 v7, 4, v0")
    a("s_bfe_u32 s92, s2, 0x30003"); a("s_lshr_b32 s93, s2, 6"); a("s_and_b32 s94, s2, 7"); a("s_and_b32 s95, s2, 63"); a("s_lshr_b32 s96, s2, 6")
    a("s_waitcnt lgkmcnt(0)")
    a("s_load_dwordx2 s[40:41], s[38:39], 0")
    srd(56, 38, 0x10000000)
    a("s_cmp_ge_u32 s3, 8"); a("s_cbranch_scc1 L_helper")

    KR, VR, QB, PR = 8, 72, 136, 140
    srd(44, 18, 0x2000000); srd(48, 20, 0x2000000)
    pat = opts.get("pat", 3)
    SS, AS, IS = {0: (131072, 16384, 1024), 1: (16384, 131072, 1024), 2: (1024, 131072, 8192), 3: (131072, 1024, 8192),
                  4: (1024, 8192, 65536), 5: (8192, 1024, 65536)}[pat]
    a("s_lshr_b32 s52, s2, 3"); a("s_lshl_b32 s52, s52, 20"); a(f"s_mul_i32 s4, s94, {SS}"); a("s_add_u32 s52, s52, s4")
    a(f"s_mul_i32 s4, s3, {AS}"); a("s_add_u32 s52, s52, s4")
    a("v_lshrrev_b32 v2, 2, v1"); a("v_lshlrev_b32 v2, 8, v2"); a("v_lshl_add_u32 v2, v7, 6, v2")
    a("v_and_b32 v3, 3, v1"); a("v_lshl_add_u32 v2, v3, 4, v2")
    a("v_lshlrev_b32 v3, 4, v0")
    thr = [opts.get("thr", 3)]
    thr2 = opts.get("thr2", 8)
    QW = opts.get("qw", 10)
    nld = [0]
    def ld(kind, i):
        if kind == "V" and i >= QW: thr[0] = thr2
        if nld[0] >= thr[0]: a(f"s_waitcnt vmcnt({thr[0]-1})")
        nld[0] += 1
        a(f"s_add_u32 s53, s52, {i*IS}")
        if kind == "K": a(f"buffer_load_dwordx4 v[{KR+4*i}:{KR+4*i+3}], v2, s[44:47], s53 offen nt")
        else: a(f"buffer_load_dwordx4 v[{VR+4*i}:{VR+4*i+3}], v3, s[48:51], s53 offen nt")
        n_ = i + (16 if kind == "V" else 0) + 1
        if n_ == opts.get("p1", 16): lds_add(F_P1)
        if n_ == opts.get("p2", 22): lds_add(F_P2)
    for i in range(16):
        if i == thr[0]:
            a("s_barrier")
            if opts.get("prof"): stamp(5)
        ld("K", i)
        if opts.get("prof") and i == 7: stamp(6)
    if opts.get("prof"): stamp(7)
    for i in range(QW): ld("V", i)
    stamp(1)
    tag_wait()
    lds_spin(F_Q, 1)
    stamp(2)
    a(f"ds_read_b128 v[{QB}:{QB+3}], v2 offset:{Q_LDS}")
    vnext = [QW]
    def nextv():
        if vnext[0] < 16:
            ld("V", vnext[0]); vnext[0] += 1
            if vnext[0] == opts.get("isspt", 16): lds_add(F_ISS)
    nextv()
    if QW + 1 < thr2: a(f"s_waitcnt vmcnt({QW+1})")
    a("s_waitcnt lgkmcnt(0)")
    for i in range(16):
        k = KR + 4 * i
        a(f"v_mfma_f32_16x16x32_bf16 v[{k}:{k+3}], v[{k}:{k+3}], v[{QB}:{QB+3}], 0")
    nextv()
    for grp in range(4):
        for c in range(4):
            for i in range(grp * 4, grp * 4 + 4):
                k = KR + 4 * i
                if c == 0: a(f"v_mov_b32_dpp v{k}, v{k} quad_perm:[0,0,0,0] {DPPM}")
                else: a(f"v_add_f32_dpp v{k}, v{k+c}, v{k} quad_perm:[{c},{c},{c},{c}] {DPPM}")
    nextv()
    T = [KR + 4 * i for i in range(16)]
    for step in range(5):
        for i in range(0, 16, 2):
            t0, t1, pk = T[i], T[i + 1], T[i] + 1
            if step == 0: a(f"v_cvt_pk_bf16_f32 v{pk}, v{t0}, v{t1}")
            if step == 1: a(f"v_lshlrev_b32 v{t0}, 16, v{pk}"); a(f"v_and_b32 v{t1}, s81, v{pk}")
            if step == 2: a(f"v_mul_f32 v{t0}, s79, v{t0}"); a(f"v_mul_f32 v{t1}, s79, v{t1}")
            if step == 3: a(f"v_cvt_pk_bf16_f32 v{pk}, v{t0}, v{t1}")
            if step == 4: a(f"v_lshlrev_b32 v{t0}, 16, v{pk}"); a(f"v_and_b32 v{t1}, s81, v{pk}")
    nextv()
    M, Lr, TMP, NM = 148, 149, 150, 151
    a(f"v_max3_f32 v{M}, v{T[0]}, v{T[1]}, v{T[2]}")
    a(f"v_max3_f32 v{TMP}, v{T[3]}, v{T[4]}, v{T[5]}")
    a(f"v_max3_f32 v{M}, v{M}, v{T[6]}, v{T[7]}")
    a(f"v_max3_f32 v{TMP}, v{TMP}, v{T[8]}, v{T[9]}")
    a(f"v_max3_f32 v{M}, v{M}, v{T[10]}, v{T[11]}")
    a(f"v_max3_f32 v{TMP}, v{TMP}, v{T[12]}, v{T[13]}")
    a(f"v_max3_f32 v{M}, v{M}, v{T[14]}, v{T[15]}")
    a(f"v_max_f32 v{M}, v{M}, v{TMP}")
    xreduce("v_max_f32", M, TMP)
    a(f"v_mul_f32 v{NM}, s80, v{M}")
    for i in range(16): a(f"v_fma_f32 v{T[i]}, v{T[i]}, s78, v{NM}")
    for i in range(16): a(f"v_exp_f32 v{T[i]}, v{T[i]}")
    nextv()
    for k in range(8): a(f"v_cvt_pk_bf16_f32 v{PR+k}, v{T[2*k]}, v{T[2*k+1]}")
    a(f"v_add_f32 v{Lr}, v{T[0]}, v{T[1]}"); a(f"v_add_f32 v{TMP}, v{T[2]}, v{T[3]}")
    for i in range(4, 16, 2):
        a(f"v_add_f32 v{Lr}, v{Lr}, v{T[i]}"); a(f"v_add_f32 v{TMP}, v{TMP}, v{T[i+1]}")
    a(f"v_add_f32 v{Lr}, v{Lr}, v{TMP}")
    xreduce("v_add_f32", Lr, TMP)
    a(f"s_mul_i32 s4, s3, {WSTR}")
    a(f"v_lshl_add_u32 v152, v0, 2, s4")
    a("v_lshrrev_b32 v153, 2, v0"); a("v_lshlrev_b32 v153, 6, v153"); a("s_lshl_b32 s4, s3, 3"); a("v_add_u32 v153, s4, v153")
    a("s_mov_b64 exec, 0x1111")
    a(f"ds_write_b64 v153, v[{M}:{M+1}] offset:{ML_LDS}")
    a("s_waitcnt lgkmcnt(0)")
    a("s_mov_b64 exec, 1")
    a(f"ds_add_u32 v5, v6 offset:{F_ML}")
    a("s_mov_b64 exec, -1")
    stamp(3)
    nextv()
    DO = 40
    BOs = (8, VR)
    def vwait(i):
        outstanding_after = vnext[0] - 1 - i
        if outstanding_after < thr[0]: a(f"s_waitcnt vmcnt({outstanding_after})")
    def perms(u, p):
        BO = BOs[u]
        i = 8 * u + 2 * p
        vwait(i + 1)
        r0, r1 = VR + 4 * i, VR + 4 * (i + 1)
        for x in range(4):
            a(f"v_perm_b32 v{BO+4*(2*x)+p}, v{r1+x}, v{r0+x}, s76")
            a(f"v_perm_b32 v{BO+4*(2*x+1)+p}, v{r1+x}, v{r0+x}, s77")
    def mfmas(u):
        for j in range(8):
            d = DO + 4 * j; b = BOs[u] + 4 * j
            c = "0" if u == 0 else f"v[{d}:{d+3}]"
            a(f"v_mfma_f32_16x16x32_bf16 v[{d}:{d+3}], v[{PR+4*u}:{PR+4*u+3}], v[{b}:{b+3}], {c}")
    nextv(); nextv()
    while vnext[0] < 16: nextv()
    for p in range(4): perms(0, p)
    mfmas(0)
    a("v_and_b32 v154, 31, v0")
    a("v_lshrrev_b32 v155, 5, v0")
    a("s_cmp_ge_u32 s3, 4"); a("s_cbranch_scc1 L_pre_hi")
    a(f"v_and_b32 v156, 3, v154"); a(f"v_mul_u32_u24 v156, {2*PS}, v156")
    a("v_lshrrev_b32 v157, 2, v154"); a("v_lshl_add_u32 v157, v155, 3, v157"); a("s_lshl_b32 s4, s3, 4"); a("v_add_u32 v157, s4, v157")
    a("v_lshl_add_u32 v156, v157, 2, v156")
    a("s_lshl_b32 s4, s3, 6"); a("v_mov_b32 v157, s4")
    a("v_lshlrev_b32 v158, 13, v155"); a("v_lshl_add_u32 v158, v154, 3, v158")
    a("s_lshl_b32 s4, s92, 2"); a("s_add_u32 s4, s4, s3"); a("s_lshl_b32 s8, s4, 14")
    a("s_lshl_b32 s4, s93, 11"); a("s_add_u32 s8, s8, s4")
    a("s_lshl_b32 s4, s94, 8"); a("s_add_u32 s8, s8, s4"); a(f"s_add_u32 s8, s8, {AP:#x}")
    a("v_mov_b32 v163, s42")
    a("s_branch L_pre_done")
    a("L_pre_hi:")
    a("v_and_b32 v159, 3, v0"); a("v_lshl_add_u32 v159, v7, 2, v159")
    a("v_bfe_u32 v158, v0, 2, 2"); a("v_lshlrev_b32 v158, 8, v158"); a("v_lshl_add_u32 v158, v159, 4, v158")
    a("s_lshl_b32 s8, s95, 13"); a("s_sub_u32 s4, s3, 4"); a("s_lshl_b32 s10, s4, 11"); a("s_add_u32 s8, s8, s10"); a(f"s_add_u32 s8, s8, {AP:#x}")
    a("s_lshl_b32 s4, s4, 7"); a("v_lshl_add_u32 v156, v159, 3, s4")
    a("L_pre_done:")
    for p in range(4): perms(1, p)
    mfmas(1)
    stamp(4)
    for j in range(8):
        a(f"ds_write_b32 v152, v{DO+4*j} offset:{OPART + j*PS}")
    a("s_waitcnt lgkmcnt(0)")
    lds_add(F_CNT)
    a("s_cmp_ge_u32 s3, 4"); a("s_cbranch_scc1 L_poller")
    lds_spin(F_ML, 8, sleep=0)
    for q in range(4): a(f"ds_read_b128 v[{16+4*q}:{19+4*q}], v157 offset:{ML_LDS + 16*q}")
    a("s_waitcnt lgkmcnt(0)")
    ms = [16 + 2 * w for w in range(8)]
    a(f"v_max3_f32 v48, v{ms[0]}, v{ms[1]}, v{ms[2]}"); a(f"v_max3_f32 v49, v{ms[3]}, v{ms[4]}, v{ms[5]}")
    a(f"v_max3_f32 v48, v48, v{ms[6]}, v{ms[7]}"); a("v_max_f32 v48, v48, v49")
    a("v_mul_f32 v49, s80, v48")
    for w in range(8): a(f"v_fma_f32 v{ms[w]}, v{ms[w]}, s78, v49")
    for w in range(8): a(f"v_exp_f32 v{ms[w]}, v{ms[w]}")
    a(f"v_mul_f32 v50, v{ms[0]}, v{ms[0]+1}")
    for w in range(1, 8): a(f"v_fmac_f32 v50, v{ms[w]}, v{ms[w]+1}")
    a("v_rcp_f32 v53, v50"); a("v_log_f32 v54, v50")
    for w in range(8): a(f"v_mul_f32 v{ms[w]}, v{ms[w]}, v53")
    a("v_sub_f32 v162, v54, v49")
    a("v_add_u32 v162, 0x80, v162"); a("v_and_b32 v162, 0xffffff00, v162"); a("v_or_b32 v162, s75, v162")
    lds_spin(F_CNT, 11, sleep=0)
    if not opts.get("prof"): stamp(5)
    for w in range(8):
        a(f"ds_read_b32 v{32+2*w}, v156 offset:{OPART + w*WSTR}")
        a(f"ds_read_b32 v{33+2*w}, v156 offset:{OPART + w*WSTR + PS}")
    if stamps: a("s_waitcnt lgkmcnt(0)")
    for w in range(8):
        if w % 2 == 0: a(f"s_waitcnt lgkmcnt({12 - 2*w if 12 - 2*w > 0 else 0})")
        if w < 2:
            a(f"v_mul_f32 v{51+2*w}, v{ms[w]}, v{32+2*w}"); a(f"v_mul_f32 v{52+2*w}, v{ms[w]}, v{33+2*w}")
        else:
            a(f"v_fmac_f32 v{51+2*(w&1)}, v{ms[w]}, v{32+2*w}"); a(f"v_fmac_f32 v{52+2*(w&1)}, v{ms[w]}, v{33+2*w}")
    a("v_add_f32 v51, v51, v53"); a("v_add_f32 v52, v52, v54")
    a("v_cvt_pk_bf16_f32 v160, v51, v52")
    a(f"v_mov_b32_dpp v161, v160 quad_perm:[1,1,3,3] {DPPM}")
    a("s_mov_b32 exec_lo, 0x55555555"); a("s_mov_b32 exec_hi, 0x55555555")
    a("buffer_store_dwordx4 v[160:163], v158, s[56:59], s8 offen sc1")
    a("s_mov_b64 exec, -1")
    if not opts.get("prof"): stamp(6)
    if stamps:
        a("s_cmp_eq_u32 s3, 0"); a("s_cbranch_scc0 L_end")
        stamp_out(0, 8)
    a("s_endpgm")
    a("L_poller:")
    G2 = [8, 12]
    aploads = [f"buffer_load_dwordx4 v[{G2[t]}:{G2[t]+3}], v158, s[56:59], s8 offen offset:{t*1024} sc1" for t in range(2)]
    mpoll("ap", aploads, G2, sleep=opts.get("ap_sleep", 1), t40=16)
    stamp(5)
    for t in range(2): a(f"v_and_b32 v{G2[t]+2}, 0xffffff00, v{G2[t]+2}")
    a("v_max_f32 v24, v10, v14")
    U8 = [32 + k for k in range(8)]
    def unp(t, e):
        a(f"v_lshlrev_b32 v{U8[4*t+2*e]}, 16, v{G2[t]+e}"); a(f"v_and_b32 v{U8[4*t+2*e+1]}, s81, v{G2[t]+e}")
    unp(0, 0)
    a(f"v_max_f32_dpp v24, v24, v24 row_ror:4 {DPPM}")
    unp(0, 1)
    a(f"v_max_f32_dpp v24, v24, v24 row_ror:8 {DPPM}")
    unp(1, 0)
    for t in range(2): a(f"v_sub_f32 v{G2[t]+2}, v{G2[t]+2}, v24")
    for t in range(2): a(f"v_exp_f32 v{G2[t]+2}, v{G2[t]+2}")
    unp(1, 1)
    a("v_add_f32 v26, v10, v14")
    for k in range(4): a(f"v_mul_f32 v{27+k}, v10, v{U8[k]}")
    for k in range(4): a(f"v_fmac_f32 v{27+k}, v14, v{U8[4+k]}")
    for ror in (4, 8):
        for r in (26, 27, 28, 29, 30): a(f"v_add_f32_dpp v{r}, v{r}, v{r} row_ror:{ror} {DPPM}")
    a("v_rcp_f32 v26, v26")
    for k in range(4): a(f"v_mul_f32 v{27+k}, v{27+k}, v26")
    a("v_cvt_pk_bf16_f32 v32, v27, v28"); a("v_cvt_pk_bf16_f32 v33, v29, v30")
    a(f"ds_write_b64 v156, v[32:33] offset:{O_LDS}")
    a("s_waitcnt lgkmcnt(0)")
    lds_add(F_O)
    if not opts.get("prof"): stamp(6)
    if stamps:
        a("s_cmp_eq_u32 s3, 7"); a("s_cbranch_scc0 L_end")
        stamp_out(1, 8)
    a("s_endpgm")

    a("L_helper:")
    a("s_barrier")
    a("s_setprio 3")
    a("s_mov_b32 s73, 0xfffffc00")
    if opts.get("cpf", 1):
        a("s_cmp_lg_u32 s3, 11"); a("s_cbranch_scc1 L_nocpf")
        a("s_getpc_b64 s[100:101]")
        a("L_pcbase:")
        a("s_and_b32 s100, s100, 0xffffff00")
        a(f"s_sub_u32 s100, s100, {opts.get('_pcoff', 0x1000):#x}"); a("s_subb_u32 s101, s101, 0")
        a("s_lshr_b32 s4, s2, 3"); a("s_and_b32 s4, s4, 7"); a("s_lshl_b32 s4, s4, 12")
        a("v_lshl_add_u32 v2, v0, 6, s4")
        a(f"v_cmp_gt_u32 vcc, {opts.get('_csize', 0x1000):#x}, v2")
        a("s_and_saveexec_b64 s[6:7], vcc")
        a("s_cbranch_execz L_cpf_x")
        a("global_load_dword v160, v2, s[100:101]")
        a("L_cpf_x:")
        a("s_mov_b64 exec, -1")
        a("L_nocpf:")
    srd(48, 16, 4096)
    a("s_sub_u32 s10, s3, 8")
    XS, XO, WT, BT, ACC = 8, 24, 40, 104, 120
    a("s_cmp_ge_u32 s2, 240"); a("s_cbranch_scc1 L_s1_skip")
    a("s_lshr_b32 s97, s2, 4"); a("s_lshl_b32 s97, s97, 3"); a("s_add_u32 s97, s97, s94"); a("s_bfe_u32 s83, s2, 0x10003")
    a("s_mov_b32 s44, s22"); a("s_mov_b32 s45, s23"); a("s_mov_b32 s46, 0x400000"); a("s_mov_b32 s98, 8192"); a("s_lshl_b32 s11, s97, 7")
    a("s_cmp_lt_u32 s2, 128"); a("s_cbranch_scc1 L_s1_sel")
    a("s_mov_b32 s44, s28"); a("s_mov_b32 s45, s29"); a(f"s_mov_b32 s46, {512*3584:#x}"); a("s_mov_b32 s98, 3584"); a("s_sub_u32 s4, s97, 64"); a("s_lshl_b32 s11, s4, 7")
    a("s_cmp_lt_u32 s97, 92"); a("s_cbranch_scc1 L_s1_sel")
    a("s_mov_b32 s44, s30"); a("s_mov_b32 s45, s31"); a("s_sub_u32 s4, s97, 92"); a("s_lshl_b32 s11, s4, 7")
    a("L_s1_sel:")
    a("s_mov_b32 s47, 0x20000")
    a("v_lshrrev_b32 v2, 2, v1"); a("v_lshlrev_b32 v2, 10, v2")
    a("s_lshl_b32 s82, s83, 2"); a("s_add_u32 s82, s82, s10")
    a("s_cmp_lg_u32 s10, 0"); a("s_cbranch_scc1 L_s1_nox")
    a("v_and_b32 v34, 3, v0"); a("v_lshl_add_u32 v34, v7, 2, v34"); a("v_lshl_add_u32 v34, v34, 6, v2")
    for q in range(4): a(f"buffer_load_dwordx4 v[{XS+4*q}:{XS+4*q+3}], v34, s[48:51], 0 offen offset:{16*q}")
    a("L_s1_nox:")
    a("s_lshl_b32 s4, s98, 3"); a("v_mul_lo_u32 v3, v7, s4"); a("v_lshl_add_u32 v3, v1, 3, v3")
    a("s_lshl_b32 s4, s98, 6"); a("s_mul_i32 s8, s82, s4"); a("s_add_u32 s8, s8, s11")
    a("s_mul_i32 s99, s98, 25")
    for su in range(2):
        for i in range(8):
            r = WT + (su * 8 + i) * 2
            a(f"buffer_load_dwordx2 v[{r}:{r+1}], v3, s[44:47], s8 offen nt")
            if not (su == 1 and i == 7): a(f"s_add_u32 s8, s8, s{98 if i < 7 else 99}")
    a("v_lshl_add_u32 v35, v7, 4, v2"); a("s_lshl_b32 s4, s82, 7"); a("v_add_u32 v35, s4, v35")
    a("s_cmp_lg_u32 s10, 0"); a("s_cbranch_scc1 L_s1_wxn")
    U = 104
    U2 = 72
    a(f"s_waitcnt vmcnt(16)")
    for k in range(16):
        a(f"v_lshlrev_b32 v{U+2*k}, 16, v{XS+k}"); a(f"v_and_b32 v{U+2*k+1}, s81, v{XS+k}")
    S0, S1, S2, S3, TT = 24, 25, 26, 27, 28
    for ci, sreg in enumerate((S0, S1, S2, S3)):
        a(f"v_add_f32 v{sreg}, v{U+ci}, v{U+4+ci}")
    for k in range(8, 32):
        sreg = (S0, S1, S2, S3)[k & 3]
        a(f"v_add_f32 v{sreg}, v{sreg}, v{U+k}")
    a(f"v_add_f32 v{S0}, v{S0}, v{S1}"); a(f"v_add_f32 v{S2}, v{S2}, v{S3}"); a(f"v_add_f32 v{S0}, v{S0}, v{S2}")
    def lred(r):
        a(f"v_add_f32_dpp v{r}, v{r}, v{r} quad_perm:[1,0,3,2] {DPPM}")
        a(f"v_add_f32_dpp v{r}, v{r}, v{r} quad_perm:[2,3,0,1] {DPPM}")
        xreduce("v_add_f32", r, TT)
    lred(S0)
    MEAN = 29
    a(f"v_mul_f32 v{MEAN}, {f2u(1.0/512):#x}, v{S0}")
    for k in range(32): a(f"v_sub_f32 v{U2+k}, v{U+k}, v{MEAN}")
    for ci, sreg in enumerate((S0, S1, S2, S3)): a(f"v_mul_f32 v{sreg}, v{U2+ci}, v{U2+ci}")
    for k in range(4, 32):
        sreg = (S0, S1, S2, S3)[k & 3]
        a(f"v_fmac_f32 v{sreg}, v{U2+k}, v{U2+k}")
    a(f"v_add_f32 v{S0}, v{S0}, v{S1}"); a(f"v_add_f32 v{S2}, v{S2}, v{S3}"); a(f"v_add_f32 v{S0}, v{S0}, v{S2}")
    lred(S0)
    a(f"v_mul_f32 v{S0}, {f2u(1.0/512):#x}, v{S0}")
    bf16r(S0); bf16r(MEAN)
    a(f"v_add_f32 v{S0}, {f2u(1e-5):#x}, v{S0}")
    bf16r(S0)
    a(f"v_sqrt_f32 v{S0}, v{S0}")
    bf16r(S0)
    RS = 30
    a(f"v_rcp_f32 v{RS}, v{S0}")
    for k in range(32): a(f"v_sub_f32 v{U+k}, v{U+k}, v{MEAN}")
    for k in range(16): a(f"v_cvt_pk_bf16_f32 v{XS+k}, v{U+2*k}, v{U+2*k+1}")
    for k in range(16): a(f"v_lshlrev_b32 v{U+2*k}, 16, v{XS+k}"); a(f"v_and_b32 v{U+2*k+1}, s81, v{XS+k}")
    for k in range(32): a(f"v_mul_f32 v{U+k}, v{U+k}, v{RS}")
    for k in range(16): a(f"v_cvt_pk_bf16_f32 v{XS+k}, v{U+2*k}, v{U+2*k+1}")
    for q in range(4): a(f"ds_write_b128 v34, v[{XS+4*q}:{XS+4*q+3}] offset:{XN_LDS + 16*q}")
    a("s_waitcnt lgkmcnt(0)")
    lds_add(F_XN)
    a("s_branch L_s1_xn")
    a("L_s1_wxn:")
    lds_spin(F_XN, 1, sleep=1)
    a("L_s1_xn:")
    for su in range(2): a(f"ds_read_b128 v[{XO+4*su}:{XO+4*su+3}], v35 offset:{XN_LDS + 64*su}")
    a("s_waitcnt lgkmcnt(0)")
    for su in range(2):
        bt = BT
        a(f"s_waitcnt vmcnt({(1 - su) * 8})")
        for p in range(4):
            r0 = WT + (su * 8 + 2 * p) * 2; r1 = r0 + 2
            for y in range(2):
                a(f"v_perm_b32 v{bt+4*(2*y)+p}, v{r1+y}, v{r0+y}, s76")
                a(f"v_perm_b32 v{bt+4*(2*y+1)+p}, v{r1+y}, v{r0+y}, s77")
        for j in range(4):
            d = ACC + 4 * j
            c = "0" if su == 0 else f"v[{d}:{d+3}]"
            a(f"v_mfma_f32_16x16x32_bf16 v[{d}:{d+3}], v[{XO+4*su}:{XO+4*su+3}], v[{bt+4*j}:{bt+4*j+3}], {c}")
    a("v_lshlrev_b32 v2, 4, v0")
    for j in range(4): a(f"v_mov_b32 v{8+j}, v{ACC+4*j}")
    a("s_cmp_eq_u32 s10, 0"); a("s_cbranch_scc1 L_s1_red")
    a("s_lshl_b32 s4, s10, 10"); a("v_add_u32 v2, s4, v2")
    a(f"ds_write_b128 v2, v[8:11] offset:{S1X - 1024}")
    a("s_waitcnt lgkmcnt(0)")
    lds_add(F_S1)
    a("s_branch L_s1_done")
    a("L_s1_red:")
    tag_wait()
    a("v_mov_b32 v26, s42"); a("v_mov_b32 v27, s43"); a("v_mov_b32 v30, s42"); a("v_mov_b32 v31, s43")
    a("s_lshl_b32 s12, s97, 11"); a(f"s_add_u32 s12, s12, {XP:#x}")
    a("s_lshl_b32 s14, s97, 10"); a(f"s_add_u32 s14, s14, {QF:#x}")
    lds_spin(F_S1, 3, sleep=0)
    for q in range(3): a(f"ds_read_b128 v[{12+4*q}:{15+4*q}], v2 offset:{S1X + 1024*q}")
    a("s_waitcnt lgkmcnt(0)")
    for j in range(4): a(f"v_add_f32 v{8+j}, v{8+j}, v{12+j}"); a(f"v_add_f32 v{16+j}, v{16+j}, v{20+j}")
    a("s_cmp_eq_u32 s83, 0"); a("s_cbranch_scc1 L_s1_qfin")
    a("v_add_f32 v24, v8, v16"); a("v_add_f32 v25, v9, v17"); a("v_add_f32 v28, v10, v18"); a("v_add_f32 v29, v11, v19")
    a("buffer_store_dwordx4 v[24:27], v2, s[56:59], s12 offen sc1")
    a("buffer_store_dwordx4 v[28:31], v2, s[56:59], s12 offen offset:1024 sc1")
    a("s_branch L_s1_done")
    a("L_s1_qfin:")
    for j in range(4): a(f"v_add_f32 v{8+j}, v{8+j}, v{16+j}")
    if opts.get("x_delay", 40): a(f"s_sleep {opts.get('x_delay', 40)}")
    mpoll("xp", [f"buffer_load_dwordx4 v[{40+4*t}:{43+4*t}], v2, s[56:59], s12 offen offset:{1024*t} sc1" for t in range(2)], [40, 44],
          sleep=opts.get("x_sleep", 4))
    a("v_add_f32 v8, v8, v40"); a("v_add_f32 v9, v9, v41"); a("v_add_f32 v10, v10, v44"); a("v_add_f32 v11, v11, v45")
    a("v_cvt_pk_bf16_f32 v24, v8, v9"); a("v_cvt_pk_bf16_f32 v25, v10, v11")
    a("buffer_store_dwordx4 v[24:27], v2, s[56:59], s14 offen sc1")
    a("s_branch L_s1_done")
    a("L_s1_skip:")
    a("L_s1_done:")
    stamp(1)
    tag_wait()
    a("s_cmp_eq_u32 s3, 9"); a("s_cbranch_scc1 L_h1")
    a("s_cmp_eq_u32 s3, 10"); a("s_cbranch_scc1 L_h2")
    a("s_cmp_eq_u32 s3, 11"); a("s_cbranch_scc1 L_h3")

    a("v_lshlrev_b32 v3, 10, v7"); a("v_lshl_add_u32 v3, v1, 4, v3")
    a("s_lshl_b32 s12, s92, 13"); a("s_lshl_b32 s4, s93, 8"); a("s_add_u32 s12, s12, s4"); a(f"s_add_u32 s12, s12, {QF:#x}"); a("s_add_u32 s13, s12, 4096")
    a("v_lshlrev_b32 v2, 7, v7"); a("v_lshl_add_u32 v2, v1, 3, v2")
    G = [40, 44]
    lds_spin(F_P1, 8, sleep=4)
    mpoll("qp", [f"buffer_load_dwordx4 v[{G[t]}:{G[t]+3}], v3, s[56:59], s{12+t} offen sc1" for t in range(2)], G,
          sleep=opts.get("q_sleep", 4), st_cnt=5)
    stamp(3)
    for t in range(2): a(f"ds_write_b64 v2, v[{G[t]}:{G[t]+1}] offset:{Q_LDS + t*512}")
    a("s_waitcnt lgkmcnt(0)")
    lds_add(F_Q)
    stamp(4)
    stamp_out(2, 6)
    a("s_endpgm")

    a("L_h1:")
    lds_add(F_CNT)
    a("s_cmp_ge_u32 s95, 56"); a("s_cbranch_scc1 L_h1_none")
    srd(52, 32, 1792 * 1024)
    W2 = 136
    a("s_lshl_b32 s12, s95, 15"); a("s_lshl_b32 s4, s96, 8"); a("s_add_u32 s12, s12, s4"); a("s_add_u32 s13, s12, 4096")
    def w2_loads():
        a("v_lshlrev_b32 v4, 13, v7"); a("v_lshl_add_u32 v4, v1, 4, v4")
        for i in range(8): a(f"buffer_load_dwordx4 v[{W2+4*i}:{W2+4*i+3}], v4, s[52:55], s{12+(i>>2)} offen offset:{(i&3)*1024} nt")
    if not defer: w2_loads()
    a("v_lshrrev_b32 v4, 5, v0"); a("v_mul_u32_u24 v3, 28672, v4"); a("v_bfe_u32 v2, v0, 3, 2"); a("v_lshl_add_u32 v3, v2, 8, v3")
    a("v_lshlrev_b32 v8, 6, v2")
    a("v_and_b32 v2, 7, v0"); a("v_lshl_add_u32 v3, v2, 4, v3"); a("v_lshl_add_u32 v8, v2, 3, v8")
    a("s_lshr_b32 s4, s95, 1"); a("s_lshl_b32 s84, s4, 10"); a("s_and_b32 s4, s95, 1"); a("s_lshl_b32 s4, s4, 7"); a("s_add_u32 s84, s84, s4"); a(f"s_add_u32 s84, s84, {QF + 64*1024:#x}")
    lds_spin(F_P2, 8, sleep=4)
    mpoll("gp", [f"buffer_load_dwordx4 v[40:43], v3, s[56:59], s84 offen sc1"], [40], sleep=opts.get("g_sleep", 8))
    stamp(3)
    a("v_mov_b32 v44, v40"); a("v_mov_b32 v45, v41")
    a("v_permlane32_swap_b32 v40, v44"); a("v_permlane32_swap_b32 v41, v45")
    ga, up, tm = 48, 52, 56
    for e in range(2):
        a(f"v_lshlrev_b32 v{ga+2*e}, 16, v{40+e}"); a(f"v_and_b32 v{ga+2*e+1}, s81, v{40+e}")
        a(f"v_lshlrev_b32 v{up+2*e}, 16, v{44+e}"); a(f"v_and_b32 v{up+2*e+1}, s81, v{44+e}")
    for e in range(4): a(f"v_mul_f32 v{tm+e}, s80, v{ga+e}")
    for e in range(4): a(f"v_exp_f32 v{tm+e}, v{tm+e}")
    for e in range(4): a(f"v_add_f32 v{tm+e}, 1.0, v{tm+e}")
    for e in range(4): a(f"v_rcp_f32 v{tm+e}, v{tm+e}")
    for e in range(4): a(f"v_mul_f32 v{tm+e}, v{ga+e}, v{tm+e}")
    for e in range(2): a(f"v_cvt_pk_bf16_f32 v{40+e}, v{tm+2*e}, v{tm+2*e+1}")
    for e in range(2): a(f"v_lshlrev_b32 v{tm+2*e}, 16, v{40+e}"); a(f"v_and_b32 v{tm+2*e+1}, s81, v{40+e}")
    for e in range(4): a(f"v_mul_f32 v{tm+e}, v{tm+e}, v{up+e}")
    for e in range(2): a(f"v_cvt_pk_bf16_f32 v{40+e}, v{tm+2*e}, v{tm+2*e+1}")
    a(f"ds_write_b64 v8, v[40:41] offset:{H_LDS}")
    a("v_lshrrev_b32 v2, 2, v1"); a("v_lshlrev_b32 v2, 6, v2"); a("v_lshl_add_u32 v2, v7, 4, v2")
    a("s_waitcnt lgkmcnt(0)")
    a(f"ds_read_b128 v[72:75], v2 offset:{H_LDS}")
    if defer:
        lds_spin(F_GO, 1, sleep=1)
        w2_loads()
    B2 = 76
    for p in range(4):
        a(f"s_waitcnt vmcnt({6-2*p})")
        r0 = W2 + 8 * p; r1 = r0 + 4
        for x in range(4):
            a(f"v_perm_b32 v{B2+4*(2*x)+p}, v{r1+x}, v{r0+x}, s76")
            a(f"v_perm_b32 v{B2+4*(2*x+1)+p}, v{r1+x}, v{r0+x}, s77")
    a("s_waitcnt lgkmcnt(0)")
    for j in range(8):
        b = B2 + 4 * j
        a(f"v_mfma_f32_16x16x32_bf16 v[{b}:{b+3}], v[72:75], v[{b}:{b+3}], 0")
    for j in range(8): a(f"v_mov_b32 v{8+j}, v{B2+4*j}")
    a("s_branch L_h1_out")
    a("L_h1_none:")
    for j in range(8): a(f"v_mov_b32 v{8+j}, 0")
    a("L_h1_out:")
    a("v_lshlrev_b32 v2, 4, v0")
    a(f"ds_write_b128 v2, v[8:11] offset:{W2R}"); a(f"ds_write_b128 v2, v[12:15] offset:{W2R+1024}")
    a("s_waitcnt lgkmcnt(0)")
    lds_add(F_W2)
    stamp(4)
    stamp_out(3, 5)
    a("s_endpgm")

    a("L_h2:")
    lds_add(F_CNT)
    srd(44, 24, 0x400000)
    a("v_lshlrev_b32 v2, 13, v7"); a("v_lshl_add_u32 v2, v1, 4, v2")
    a("s_lshl_b32 s12, s95, 16"); a("s_lshl_b32 s4, s96, 8"); a("s_add_u32 s12, s12, s4")
    a("s_add_u32 s13, s12, 4096"); a("s_add_u32 s14, s12, 32768"); a("s_add_u32 s15, s12, 36864")
    oplay = opts.get("oplay", 1)
    if oplay == 0:
        a("v_lshlrev_b32 v44, 10, v7"); a("v_lshl_add_u32 v44, v1, 4, v44")
        a("s_lshl_b32 s87, s2, 12"); a(f"s_add_u32 s87, s87, {OP:#x}")
        for jp in range(1, 4): a(f"s_add_u32 s{87+jp}, s87, {256*jp}")
    elif oplay == 1:
        a("v_lshlrev_b32 v44, 16, v7"); a("v_lshl_add_u32 v44, v1, 4, v44")
        a("s_lshl_b32 s87, s96, 18"); a("s_lshl_b32 s4, s95, 8"); a("s_add_u32 s87, s87, s4"); a(f"s_add_u32 s87, s87, {OP:#x}")
        for jp in range(1, 4): a(f"s_add_u32 s{87+jp}, s87, {16384*jp}")
    else:
        a("v_lshlrev_b32 v44, 16, v7"); a("v_lshrrev_b32 v45, 2, v1"); a("v_lshl_add_u32 v44, v45, 12, v44"); a("v_and_b32 v45, 3, v1"); a("v_lshl_add_u32 v44, v45, 4, v44")
        a("s_lshl_b32 s87, s96, 18"); a("s_lshl_b32 s4, s95, 6"); a("s_add_u32 s87, s87, s4"); a(f"s_add_u32 s87, s87, {OP:#x}")
        for jp in range(1, 4): a(f"s_add_u32 s{87+jp}, s87, {16384*jp}")
    def wo_loads():
        for u in range(2):
            for i in range(8):
                r = (8 if u == 0 else 104) + 4 * i
                a(f"buffer_load_dwordx4 v[{r}:{r+3}], v2, s[44:47], s{12+2*u+(i>>2)} offen offset:{(i&3)*1024} nt")
    if not defer: wo_loads()
    a("v_lshrrev_b32 v47, 2, v1"); a("v_lshlrev_b32 v47, 7, v47"); a("v_lshl_add_u32 v47, v7, 4, v47")
    a("v_lshlrev_b32 v46, 4, v0")
    if defer:
        lds_spin(F_GO, 1, sleep=1)
        wo_loads()
    B0, B1 = 72, 8
    for p in range(4):
        a(f"s_waitcnt vmcnt({14-2*p})")
        r0 = 8 + 8 * p; r1 = r0 + 4
        for x in range(4):
            a(f"v_perm_b32 v{B0+4*(2*x)+p}, v{r1+x}, v{r0+x}, s76")
            a(f"v_perm_b32 v{B0+4*(2*x+1)+p}, v{r1+x}, v{r0+x}, s77")
    for p in range(4):
        a(f"s_waitcnt vmcnt({6-2*p})")
        r0 = 104 + 8 * p; r1 = r0 + 4
        for x in range(4):
            a(f"v_perm_b32 v{B1+4*(2*x)+p}, v{r1+x}, v{r0+x}, s76")
            a(f"v_perm_b32 v{B1+4*(2*x+1)+p}, v{r1+x}, v{r0+x}, s77")
    lds_spin(F_W2, 1)
    a(f"ds_read_b128 v[48:51], v46 offset:{W2R}"); a(f"ds_read_b128 v[52:55], v46 offset:{W2R+1024}")
    for jp in range(4): a(f"v_mov_b32 v{106+4*jp}, s42"); a(f"v_mov_b32 v{107+4*jp}, s43")
    stamp(2)
    lds_spin(F_O, 4, sleep=0)
    stamp(3)
    a(f"ds_read_b128 v[64:67], v47 offset:{O_LDS}"); a(f"ds_read_b128 v[68:71], v47 offset:{O_LDS+64}")
    a("s_waitcnt lgkmcnt(1)" if not stamps else "s_waitcnt lgkmcnt(0)")
    for j in range(8):
        d = B0 + 4 * j
        a(f"v_mfma_f32_16x16x32_bf16 v[{d}:{d+3}], v[64:67], v[{d}:{d+3}], 0")
    a("s_waitcnt lgkmcnt(0)")
    for j in range(8):
        d = B0 + 4 * j; b = B1 + 4 * j
        a(f"v_mfma_f32_16x16x32_bf16 v[{d}:{d+3}], v[68:71], v[{b}:{b+3}], v[{d}:{d+3}]")
        if j >= 3 and j % 2 == 1:
            jp = (j - 3) // 2
            a(f"v_add_f32 v{104+4*jp}, v{B0+8*jp}, v{48+2*jp}"); a(f"v_add_f32 v{105+4*jp}, v{B0+8*jp+4}, v{49+2*jp}")
            a(f"buffer_store_dwordx4 v[{104+4*jp}:{107+4*jp}], v44, s[56:59], s{87+jp} offen sc1")
    for jp in (3,):
        a(f"v_add_f32 v{104+4*jp}, v{B0+8*jp}, v{48+2*jp}"); a(f"v_add_f32 v{105+4*jp}, v{B0+8*jp+4}, v{49+2*jp}")
        a(f"buffer_store_dwordx4 v[{104+4*jp}:{107+4*jp}], v44, s[56:59], s{87+jp} offen sc1")
    lds_add(F_PB)
    stamp(4)
    stamp_out(4, 5)
    a("s_endpgm")

    a("L_h3:")
    lds_add(F_CNT)
    srd(52, 34, 4096)
    a("s_bfe_u32 s4, s2, 0x20002"); a("s_lshl_b32 s86, s4, 10")
    a("s_and_b32 s4, s2, 3"); a("s_lshl_b32 s4, s4, 8"); a("s_add_u32 s86, s86, s4")
    a("s_lshl_b32 s4, s96, 6"); a("s_add_u32 s86, s86, s4")
    a("s_bfe_u32 s4, s2, 0x20004"); a("s_lshl_b32 s4, s4, 2"); a("s_add_u32 s86, s86, s4")
    a("v_and_b32 v40, 3, v0"); a("v_lshlrev_b32 v40, 4, v40")
    a("buffer_load_dword v41, v40, s[48:51], s86 offen")
    if opts.get("pretouch", 1):
        a("buffer_load_dword v43, v40, s[52:55], s86 offen")
    if oplay == 0:
        a("v_lshrrev_b32 v45, 2, v0"); a("v_lshl_add_u32 v45, v45, 12, v40")
        a("s_and_b32 s4, s2, 3"); a("s_lshl_b32 s88, s4, 18"); a("s_bfe_u32 s4, s2, 0x20002"); a("s_lshl_b32 s4, s4, 10"); a("s_add_u32 s88, s88, s4")
        a("s_bfe_u32 s4, s2, 0x20004"); a("s_lshl_b32 s4, s4, 8"); a("s_add_u32 s88, s88, s4"); a("s_lshl_b32 s4, s96, 6"); a("s_add_u32 s88, s88, s4"); a(f"s_add_u32 s88, s88, {OP:#x}")
        for t in range(1, 4): a(f"s_add_u32 s{88+t}, s88, {65536*t}")
    else:
        a("s_and_b32 s4, s2, 3"); a("s_lshl_b32 s88, s4, 18"); a("s_bfe_u32 s4, s2, 0x20002"); a("s_lshl_b32 s4, s4, 16"); a("s_add_u32 s88, s88, s4")
        a("s_bfe_u32 s4, s2, 0x20004"); a("s_lshl_b32 s4, s4, 14"); a("s_add_u32 s88, s88, s4"); a(f"s_add_u32 s88, s88, {OP:#x}")
        if oplay == 1:
            a("v_lshrrev_b32 v45, 2, v0"); a("v_lshl_add_u32 v45, v45, 8, v40")
            a("s_lshl_b32 s4, s96, 6"); a("s_add_u32 s88, s88, s4")
            for t in range(1, 4): a(f"s_add_u32 s{88+t}, s88, {4096*t}")
        else:
            a("v_lshlrev_b32 v45, 4, v0")
            a("s_lshl_b32 s4, s96, 12"); a("s_add_u32 s88, s88, s4")
            for t in range(1, 4): a(f"s_add_u32 s{88+t}, s88, {1024*t}")
    a("s_waitcnt vmcnt(0)")
    a("v_lshlrev_b32 v56, 16, v41"); a("v_and_b32 v57, s81, v41")
    TH = opts.get("go_th", 0)
    a("v_and_b32 v2, 31, v0"); a("v_lshlrev_b32 v2, 9, v2")
    a("s_lshl_b32 s8, s95, 14"); a(f"s_add_u32 s8, s8, {AP:#x}")
    lds_spin(F_ISS, 8)
    if TH > 0:
        a("s_mov_b32 s9, 0")
        a("s_mov_b64 exec, 0xffffffff")
        a("L_go:")
        a("buffer_load_dwordx4 v[8:11], v2, s[56:59], s8 offen offset:496 sc1")
        a("s_waitcnt vmcnt(0)")
        a("v_cmp_eq_u64 vcc, s[42:43], v[10:11]")
        a("s_bcnt1_i32_b64 s4, vcc")
        a(f"s_cmp_ge_u32 s4, {TH}"); a("s_cbranch_scc1 L_go_done")
        a(f"s_sleep {opts.get('go_sleep', 3)}")
        a("s_add_u32 s9, s9, 1"); a(f"s_cmp_lt_u32 s9, {BOUND}"); a("s_cbranch_scc1 L_go")
        a("L_go_done:")
        a("s_mov_b64 exec, -1")
    lds_add(F_GO)
    if opts.get("fin_pb", 1): lds_spin(F_PB, 1, sleep=1)
    else: lds_spin(F_O, opts.get("fin_start", 4), sleep=1)
    if opts.get("fin_delay", 12): a(f"s_sleep {opts.get('fin_delay', 12)}")
    stamp(2)
    GF = [120 + 4 * t for t in range(4)]
    mpoll("op", [f"buffer_load_dwordx4 v[{GF[t]}:{GF[t]+3}], v45, s[56:59], s{88+t} offen sc1" for t in range(4)], GF,
          sleep=opts.get("op_sleep", 0), st_cnt=5)
    stamp(3)
    for e in range(2):
        a(f"v_add_f32 v{GF[0]+e}, v{GF[0]+e}, v{GF[1]+e}"); a(f"v_add_f32 v{GF[2]+e}, v{GF[2]+e}, v{GF[3]+e}")
    for e in range(2): a(f"v_add_f32 v{GF[0]+e}, v{GF[0]+e}, v{GF[2]+e}")
    for ror in (4, 8):
        for e in range(2): a(f"v_add_f32_dpp v{GF[0]+e}, v{GF[0]+e}, v{GF[0]+e} row_ror:{ror} {DPPM}")
    for which in (16, 32): xswap("v_add_f32", [GF[0], GF[0] + 1], [GF[1], GF[1] + 1], which)
    a(f"v_add_f32 v56, v56, v{GF[0]}"); a(f"v_add_f32 v57, v57, v{GF[0]+1}")
    a("v_cvt_pk_bf16_f32 v46, v56, v57")
    a("s_mov_b64 exec, 0xf")
    a("buffer_store_dword v46, v40, s[52:55], s86 offen")
    a("s_cmp_lg_u32 s2, 0"); a("s_cbranch_scc1 L_h3_fin")
    a("s_mov_b64 exec, 1")
    a("v_mov_b32 v46, s42"); a("v_mov_b32 v47, s43")
    a("buffer_store_dwordx2 v[46:47], v5, s[56:59], 0 offen sc1")
    a("L_h3_fin:")
    a("s_mov_b64 exec, -1")
    stamp(4, True)
    stamp_out(5, 6)
    a("L_end:")
    a("s_endpgm")
    a("L_code_end:")
    a('.section .rodata,"a"'); a(".p2align 6"); a(f".amdhsa_kernel {NAME}_kernel")
    for l in (".amdhsa_next_free_vgpr 168", ".amdhsa_next_free_sgpr 102", ".amdhsa_accum_offset 168", ".amdhsa_group_segment_fixed_size 0", ".amdhsa_float_denorm_mode_32 3",
              ".amdhsa_kernarg_size 96", ".amdhsa_user_sgpr_count 2", ".amdhsa_user_sgpr_kernarg_segment_ptr 1", ".amdhsa_system_sgpr_workgroup_id_x 1"):
        a("  " + l)
    a(".end_amdhsa_kernel")
    open(out, "w").write(a.finalize())
    if opts.get("cpf", 1) and "_pcoff" not in opts:
        import subprocess
        subprocess.run(["clang", "-x", "assembler", "-target", "amdgcn-amd-amdhsa", "-mcpu=gfx950", "-c", out, "-o", "_g.o"], check=True)
        nm = subprocess.run(["llvm-objdump", "-t", "_g.o"], capture_output=True, text=True).stdout
        sym = {l.split()[-1]: int(l.split()[0], 16) for l in nm.splitlines() if ".text" in l and l[:8] == "00000000"}
        o2 = dict(opts); o2["_pcoff"] = sym["L_pcbase"] & 0xffffff00; o2["_csize"] = sym["L_code_end"]
        assert o2["_pcoff"] > 64 and o2["_csize"] > 64
        gen(out, stamps, o2)

if __name__ == "__main__":
    gen("k_final.s")
```
